```python
import torch

def _softmax(x, axis=-1):
    return torch.softmax(x, dim=axis)
def _gelu(x):
    return torch.nn.functional.gelu(x, approximate="tanh")
def _silu(x):
    return torch.nn.functional.silu(x)
def _sigmoid(x):
    return torch.sigmoid(x)
def _layernorm(x, axis=-1, eps=1e-5):
    m = x.mean(dim=axis, keepdim=True)
    v = x.var(dim=axis, keepdim=True, unbiased=False)
    return (x - m) / torch.sqrt(v + eps)
def _scatter_add(tgt, idx, src, axis=0):
    return tgt.clone().index_add_(axis, idx, src)
def _segment_sum(src, seg, n):
    out = torch.zeros((n,) + src.shape[1:], dtype=src.dtype)
    return out.index_add_(0, seg, src)
def _pad(x, pw):
    flat = tuple(v for pair in reversed(pw) for v in pair)
    return torch.nn.functional.pad(x, flat)

kernel_name = 'parallel_sum__sliding_block__glu_gated_bilinear__prompt'

def setup_inputs():

    _w = (lambda a: (lambda t: t.to(torch.bfloat16) if t.is_floating_point() else t)(torch.as_tensor(a)))
    def _A_setup():
        B, S, D = 1, 2048, 640
        return {
            "x": _w((lambda *s: torch.randn(*s, dtype=torch.bfloat16) * 0.05)(B, S, D)),
            "wqkv": _w((lambda *s: torch.randn(*s, dtype=torch.bfloat16) * 0.05)(D, 3 * D)),
            "wo": _w((lambda *s: torch.randn(*s, dtype=torch.bfloat16) * 0.05)(D, D)),
        }
    _A_in = _A_setup()

    def _B_setup():
        B, S, D, F = 1, 2048, 640, 1536
        return {
            "x": _w((lambda *s: torch.randn(*s, dtype=torch.bfloat16) * 0.05)(B, S, D)),
            "w_gate": _w((lambda *s: torch.randn(*s, dtype=torch.bfloat16) * 0.8)(D, F) * (D ** -0.5)),
            "w_up": _w((lambda *s: torch.randn(*s, dtype=torch.bfloat16) * 0.8)(D, F) * (D ** -0.5)),
            "w_down": _w((lambda *s: torch.randn(*s, dtype=torch.bfloat16) * 0.8)(F, D) * (F ** -0.5)),
        }
    _B_in = _B_setup()

    return {
        "A_x": _A_in["x"],
        "A_wqkv": _A_in["wqkv"],
        "A_wo": _A_in["wo"],
        "B_x": _B_in["x"],
        "B_w_gate": _B_in["w_gate"],
        "B_w_up": _B_in["w_up"],
        "B_w_down": _B_in["w_down"],
    }

def reference(A_x, A_wqkv, A_wo, B_x, B_w_gate, B_w_up, B_w_down):
    def _A_ref(x, wqkv, wo):
        B, S, D = x.shape
        H = 32; Dh = D // H; W = 256
        qkv = (lambda x, *d: x.permute(*d))((x @ wqkv).reshape(B, S, 3, H, Dh), 2, 0, 3, 1, 4)
        q, k, v = qkv[0], qkv[1], qkv[2]
        scores = torch.einsum("bhqd,bhkd->bhqk", q, k) * (Dh ** -0.5)
        idx = torch.arange(S)
        mask = (idx[:, None] - idx[None, :] >= 0) & (idx[:, None] - idx[None, :] < W)
        scores = torch.where(mask[None, None], scores, -1e9)
        p = _softmax(scores, axis=-1)
        o = torch.einsum("bhqk,bhkd->bhqd", p, v)
        return (lambda x, *d: x.permute(*d))(o, 0, 2, 1, 3).reshape(B, S, D) @ wo

    def _B_ref(x, w_gate, w_up, w_down):
        g = torch.einsum("bsd,df->bsf", x, w_gate)
        u = torch.einsum("bsd,df->bsf", x, w_up)
        h = g * u
        return torch.einsum("bsf,fd->bsd", h, w_down)

    x = A_x
    xn = _layernorm(x, axis=-1)
    return x + _A_ref(xn, A_wqkv, A_wo) + _B_ref(xn, B_w_gate, B_w_up, B_w_down)
```

```python
class G:
    def __init__(s):
        s.L=[]; s.vm=[]; s.lg=0; s.vm_done=-1; s.lg_done=-1; s.lab=0
    def __call__(s,t):
        for l in t.split("\n"):
            l=l.strip()
            if l: s.L.append("    "+l if not l.endswith(":") else l)
    def label(s,p="L"):
        s.lab+=1; return f"{p}_{s.lab}"
    def vmem(s,t,kind='ld'):
        s(t); s.vm.append(kind); return len(s.vm)-1
    def vwait(s,tok):
        if tok<=s.vm_done: return
        n=sum(1 for k in s.vm[tok+1:] if k=='ld')
        assert s.vm[tok]=='ld'
        n=min(n,63)
        s(f"s_waitcnt vmcnt({n})"); s.vm_done=tok
    def vwait0(s):
        s("s_waitcnt vmcnt(0)"); s.vm_done=len(s.vm)-1
    def ds(s,t):
        s(t); s.lg+=1; return s.lg-1
    def lwait(s,tok):
        if tok<=s.lg_done: return
        n=min(s.lg-1-tok,15)
        s(f"s_waitcnt lgkmcnt({n})"); s.lg_done=s.lg-1-n
    def lwait0(s):
        s("s_waitcnt lgkmcnt(0)"); s.lg_done=s.lg-1
    def state(s): return (list(s.vm),s.lg,s.vm_done,s.lg_done)
    def restore(s,st): s.vm=list(st[0]); s.lg,s.vm_done,s.lg_done=st[1:]
    def text(s): return "\n".join(s.L)
def vr(a,n=1): return f"v{a}" if n==1 else f"v[{a}:{a+n-1}]"
def sr(a,n=1): return f"s{a}" if n==1 else f"s[{a}:{a+n-1}]"
def srd(g,d,lo,hi,off,size):
    if off is None: g(f"s_mov_b32 s{d}, {lo}\ns_mov_b32 s{d+1}, {hi}")
    else: g(f"s_add_u32 s{d}, {lo}, {off}\ns_addc_u32 s{d+1}, {hi}, 0")
    g(f"s_mov_b32 s{d+2}, {size}\ns_mov_b32 s{d+3}, 0x20000")
def khead(name): return f".globl {name}\n.p2align 8\n.type {name},@function\n{name}:"
def kdesc(name,nv=256,acc=None):
    return f""".p2align 6
.amdhsa_kernel {name}
  .amdhsa_next_free_vgpr {nv}
  .amdhsa_next_free_sgpr 102
  .amdhsa_accum_offset {acc or min(nv,256)}
  .amdhsa_group_segment_fixed_size 0
  .amdhsa_kernarg_size 80
  .amdhsa_user_sgpr_count 2
  .amdhsa_user_sgpr_kernarg_segment_ptr 1
  .amdhsa_system_sgpr_workgroup_id_x 1
.end_amdhsa_kernel"""
QKV_OFF=0; QKV_TB=122880
HO_OFF=0x800000; HO_TB=139264
W2_OFF=0x1200000
QSCALE=(20**-0.5)*1.4426950408889634
import struct
def f32(x): return "0x%08x"%struct.unpack("<I",struct.pack("<f",x))[0]
```

```python
from gfw import *
XR=96; ACC=[48,64,80]; WF=32; NWF=4
NB=9
def k1_body(g, st_mod=""):
    g("""s_load_dwordx4 s[4:7], s[0:1], 0
    s_load_dwordx2 s[8:9], s[0:1], 16
    s_load_dwordx4 s[12:15], s[0:1], 32
    s_load_dwordx2 s[16:17], s[0:1], 48
    s_load_dwordx2 s[18:19], s[0:1], 72
    v_lshrrev_b32 v1, 6, v0
    v_and_b32 v0, 63, v0
    s_nop 0
    v_readfirstlane_b32 s24, v1
    s_and_b32 s46, s2, 7
    s_lshr_b32 s47, s2, 3
    s_and_b32 s27, s46, 1
    s_lshl_b32 s27, s27, 3
    s_and_b32 s33, s47, 7
    s_add_u32 s27, s27, s33
    s_lshr_b32 s28, s46, 1
    s_lshl_b32 s28, s28, 2
    s_lshr_b32 s33, s47, 3
    s_add_u32 s28, s28, s33
    s_and_b32 s25, s24, 3
    s_lshr_b32 s26, s24, 2
    s_lshl_b32 s30, s24, 10
    s_mov_b32 s45, 0x3f803f80""")
    g("""s_sub_u32 s46, s28, 8
    s_mul_i32 s47, s46, 3
    s_lshl_b32 s33, s28, 1
    s_cmp_ge_u32 s28, 8
    s_cselect_b32 s29, 1, 0
    s_cselect_b32 s34, s47, s33
    s_add_u32 s35, s34, s29
    s_cmp_ge_u32 s28, 6
    s_cselect_b32 s36, 22, 24
    s_add_u32 s36, s36, s28
    s_add_u32 s47, s47, 2
    s_add_u32 s33, s33, 1
    s_add_u32 s46, s46, 16
    s_cmp_ge_u32 s28, 8
    s_cselect_b32 s36, s47, s36
    s_cselect_b32 s37, s46, s33
    s_mov_b32 s46, 3072
    s_mov_b32 s47, 3840
    s_cselect_b32 s32, s47, s46""")
    g("""v_lshrrev_b32 v2, 3, v0
    s_lshl_b32 s33, s24, 3
    v_add_u32 v2, s33, v2
    v_and_b32 v3, 7, v0
    v_bfe_u32 v4, v2, 1, 3
    v_xor_b32 v4, v4, v3
    v_lshlrev_b32 v4, 4, v4
    s_movk_i32 s33, 1280
    v_mad_u32_u24 v8, v2, s33, v4
    v_bfe_u32 v4, v2, 1, 1
    v_lshlrev_b32 v4, 2, v4
    v_xor_b32 v4, v4, v3
    v_lshlrev_b32 v4, 4, v4
    v_mad_u32_u24 v9, v2, s32, v4
    v_mad_u32_u24 v10, v2, s47, v4
    v_mad_u32_u24 v11, v2, s46, v4
    s_mul_i32 s33, s27, 163840
    s_mul_i32 s38, s32, 639
    s_add_u32 s38, s38, 128
    s_lshl_b32 s32, s32, 6
    s_lshl_b32 s46, s34, 7
    s_lshl_b32 s47, s35, 7
    s_waitcnt lgkmcnt(0)""")
    srd(g,48,"s4","s5","s33",163840)
    g("""s_cmp_eq_u32 s29, 1
    s_cselect_b32 s52, s6, s12
    s_cselect_b32 s53, s7, s13
    s_cselect_b32 s56, s6, s14
    s_cselect_b32 s57, s7, s15""")
    srd(g,52,"s52","s53","s46","s38")
    srd(g,56,"s56","s57","s47","s38")
    g("s_mov_b32 s31, 0")
    items=[]
    for s in range(10): items+= [("x",s),("w0",s)]
    for s in range(5): items.append(("w1",s))
    for s in range(10): items.append(("w2",s))
    tok={}
    def issue(it):
        if it>=len(items): return
        kind,j=items[it]; base=(it%NB)*16384
        for t in range(2):
            g(f"s_add_u32 m0, s30, {base+t*8192}")
            if kind=="x":
                g(f"s_mov_b32 s33, {t*64*1280+j*128}"); a=("v8",48,"s33")
            elif kind=="w0":
                g("s_nop 0"); a=("v9",52+4*t,"s31")
            elif kind=="w1":
                g(f"s_mov_b32 s33, {(128*j+64*t)*3840}"); a=("v10",60,"s33")
            else:
                g(f"s_mov_b32 s33, {64*j*3072}"); a=("v11",64+4*t,"s33")
            tok[it]=g.vmem(f"buffer_load_dwordx4 {a[0]}, s[{a[1]}:{a[1]+3}], {a[2]} offen lds")
        if kind=="w0": g("s_add_u32 s31, s31, s32")
    for it in range(NB): issue(it)
    g("s_lshl_b32 s46, s36, 7"); srd(g,60,"s6","s7","s46",639*3840+128)
    g("s_lshl_b32 s46, s37, 7"); srd(g,64,"s12","s13","s46",639*3072+128); srd(g,68,"s14","s15","s46",639*3072+128)
    srd(g,72,"s18","s19",None,64*QKV_TB)
    srd(g,76,"s18","s19",HO_OFF,64*HO_TB)
    g(f"""s_lshl_b32 s38, s34, 12
    s_lshl_b32 s39, s35, 12
    s_lshl_b32 s40, s36, 12
    s_lshl_b32 s41, s37, 12
    s_mov_b32 s46, {f32(QSCALE)}
    s_cmp_lt_u32 s34, 10
    s_cselect_b32 s42, s46, 1.0
    s_cmp_lt_u32 s35, 10
    s_cselect_b32 s43, s46, 1.0
    s_cmp_lt_u32 s36, 10
    s_cselect_b32 s44, s46, 1.0""")
    g("""v_lshrrev_b32 v12, 5, v0
    v_bfe_u32 v13, v0, 2, 2
    v_lshl_add_u32 v1, v12, 3, v13
    v_lshlrev_b32 v1, 7, v1
    v_lshrrev_b32 v13, 1, v13
    v_xor_b32 v13, s26, v13
    v_lshl_add_u32 v1, v13, 6, v1
    v_bfe_u32 v13, v0, 4, 1
    v_lshl_add_u32 v1, v13, 5, v1
    v_and_b32 v13, 3, v0
    v_lshl_add_u32 v1, v13, 3, v1
    v_add_u32 v2, 0x10000, v1
    v_add_u32 v3, 0x20000, v1""")
    g("""v_and_b32 v29, 31, v0
    v_bfe_u32 v13, v0, 1, 3
    v_xor_b32 v13, v13, v12
    v_lshlrev_b32 v13, 4, v13
    s_lshl_b32 s46, s25, 12
    v_lshl_add_u32 v4, v29, 7, v13
    v_add_u32 v4, s46, v4
    v_xor_b32 v5, 32, v4
    v_xor_b32 v6, 64, v4
    v_xor_b32 v7, 96, v4""")
    g(f"""s_lshl_b32 s46, s27, 2
    s_add_u32 s46, s46, s25
    s_mul_i32 s47, s46, {QKV_TB}
    s_lshl_b32 s33, s26, 11
    s_add_u32 s47, s47, s33
    v_lshlrev_b32 v26, 3, v29
    v_lshl_add_u32 v26, v12, 8, v26
    v_add_u32 v26, s47, v26
    s_mul_i32 s47, s46, {HO_TB}
    s_add_u32 s47, s47, s33
    v_lshlrev_b32 v27, 4, v29
    v_lshl_add_u32 v27, v12, 9, v27
    v_add_u32 v27, s47, v27
    v_mov_b32 v12, 0
    v_mov_b32 v13, 0
    v_mov_b32 v14, 0
    v_mov_b32 v15, 0
    v_mov_b32 v28, 0
    v_mov_b32 v18, 0
    v_mov_b32 v19, 0
    v_mov_b32 v22, 0
    v_mov_b32 v23, 0""")
    CS={0:12,1:13,2:28}
    def info(n):
        if n<80: return (n//8,(n%8)//2,n%2,4*(n//8)+(n%8)//2,n%2,n<2)
        if n<120:
            m=n-80; return (n//8,m%4,(m%8)//4,m,2,m==0)
        m=n-120; return (n//8,(m%8)//2,m%2,4*(m//8)+(m%8)//2,m%2,m<2)
    def step_items(s): return [2*s,2*s+1] if s<10 else [10+s]
    ftok={}; xtok={}; nxt=[NB]
    def reads(n):
        if n>=200: return
        s,i,sub,ks,a,first=info(n)
        if n%8==0:
            g.vwait(tok[step_items(s)[-1]]); g("s_barrier")
        if n<80 and n%2==0:
            base=((2*s)%NB)*16384
            if base<65536: xtok[ks]=g.ds(f"ds_read_b128 {vr(XR+4*ks,4)}, v{4+i} offset:{base}")
            else:
                g(f"v_add_u32 v30, {base}, v{4+i}"); xtok[ks]=g.ds(f"ds_read_b128 {vr(XR+4*ks,4)}, v30")
        off=(step_items(s)[-1]%NB)*16384+sub*8192+i*2048
        b=1+off//65536; off%=65536; r=WF+4*(n%NWF)
        g.ds(f"ds_read_b64_tr_b16 {vr(r,2)}, v{b} offset:{off}")
        ftok[n]=g.ds(f"ds_read_b64_tr_b16 {vr(r+2,2)}, v{b} offset:{off+512}")
        if n%8==1 and s>=2:
            for _ in step_items(s-2): issue(nxt[0]); nxt[0]+=1
    def corr(a):
        c=CS[a]
        return [f"v_cvt_pk_bf16_f32 v20, v{c}, v{c}","v_and_b32 v20, 0xffff0000, v20",f"v_sub_f32 v21, v{c}, v20",
                f"v_cvt_pk_bf16_f32 v20, v{c}, v21",f"v_cvt_pk_bf16_f32 v21, v{c}, v21",f"v_mov_b32 v{c}, 0","s_nop 0",
                f"v_mfma_f32_32x32x16_bf16 {vr(ACC[a],16)}, v[20:23], v[16:19], {vr(ACC[a],16)}"]
    stats=["v_mov_b32 v30, v14","v_mov_b32 v31, v15","s_nop 0","v_permlane32_swap_b32 v14, v30","v_permlane32_swap_b32 v15, v31",
           "v_add_f32 v14, v14, v30","v_add_f32 v15, v15, v31",f"v_mul_f32 v14, {f32(-1/640)}, v14",f"v_mul_f32 v15, {f32(1/640)}, v15",
           "v_fma_f32 v15, -v14, v14, v15","v_max_f32 v15, 0, v15",f"v_add_f32 v15, {f32(1e-5)}, v15","v_rsq_f32 v24, v15",
           "v_cvt_pk_bf16_f32 v16, v14, v14","v_and_b32 v30, 0xffff0000, v16","v_sub_f32 v30, v14, v30","v_cvt_pk_bf16_f32 v17, v30, v30",
           "v_mul_f32 v25, v24, v24"]
    def epi_qkv(a,ssc,sso):
        A=ACC[a]; o=[f"v_mul_f32 v30, {ssc}, v24"]
        for gq in range(4):
            r=A+4*gq
            o+=[f"v_pk_mul_f32 {vr(r,2)}, {vr(r,2)}, v[30:31] op_sel_hi:[1,0]",f"v_pk_mul_f32 {vr(r+2,2)}, {vr(r+2,2)}, v[30:31] op_sel_hi:[1,0]",
                f"v_cvt_pk_bf16_f32 v{r}, v{r}, v{r+1}",f"v_cvt_pk_bf16_f32 v{r+1}, v{r+2}, v{r+3}",
                ("st",f"buffer_store_dwordx2 {vr(r,2)}, v26, s[72:75], {sso} offen offset:{gq*512}{st_mod}")]
        return o
    def epi_ffn(sso):
        A,B=ACC[0],ACC[1]; o=[]
        for h in range(2):
            r=A+8*h; q=B+8*h
            for k in range(0,8,2): o.append(f"v_pk_mul_f32 {vr(r+k,2)}, {vr(r+k,2)}, {vr(q+k,2)}")
            for k in range(0,8,2): o.append(f"v_pk_mul_f32 {vr(r+k,2)}, {vr(r+k,2)}, v[24:25] op_sel:[0,1] op_sel_hi:[1,1]")
            for k in range(4): o.append(f"v_cvt_pk_bf16_f32 v{r+k}, v{r+2*k}, v{r+2*k+1}")
            o.append(("st",f"buffer_store_dwordx4 {vr(r,4)}, v27, s[76:79], {sso} offen offset:{h*1024}{st_mod}"))
        return o
    GAP=[None]*8
    def emit_side(op):
        if op is None: return
        if isinstance(op,tuple): g.vmem(op[1],'st')
        else: g(op)
    def run(n0,n1,side,per):
        side=list(side)
        for n in range(n0,n1):
            s,i,sub,ks,a,first=info(n)
            if n<80: g.lwait(xtok[ks])
            g.lwait(ftok[n]); r=WF+4*(n%NWF)
            g(f"v_mfma_f32_32x32x16_bf16 {vr(ACC[a],16)}, {vr(r,4)}, {vr(XR+4*ks,4)}, {'0' if first else vr(ACC[a],16)}")
            for k in range(4): g(f"v_dot2c_f32_bf16 v{CS[a]}, s45, v{r+k}")
            reads(n+NWF)
            if n<80:
                for k in range(2):
                    x=XR+4*ks+2*(n%2)+k
                    g(f"v_dot2c_f32_bf16 v14, s45, v{x}\nv_dot2c_f32_bf16 v15, v{x}, v{x}")
            for _ in range(per):
                if side: emit_side(side.pop(0))
        assert not side, len(side)
    for n in range(NWF): reads(n)
    run(0,80,[],0)
    LY=g.label("K1Y"); LJ=g.label("K1J")
    g(f"s_cmp_eq_u32 s29, 1\ns_cbranch_scc1 {LY}")
    st=g.state(); sv=(dict(ftok),list(nxt),dict(tok))
    run(80,120,stats+corr(0)+corr(1)+GAP+epi_ffn("s38"),3)
    g(f"s_branch {LJ}\n{LY}:")
    endX=g.state(); tokX=dict(tok)
    g.restore(st); ftok.update(sv[0]); nxt[0]=sv[1][0]
    run(80,120,stats+corr(0)+corr(1)+GAP+epi_qkv(0,"s42","s38")+epi_qkv(1,"s43","s39"),3)
    g(f"{LJ}:")
    assert [k for k in endX[0] if k=='ld']==[k for k in g.vm if k=='ld'] and endX[1]==g.lg
    w2=["s_lshl_b32 s46, s24, 8","s_add_u32 s46, s46, s2","s_mul_i32 s47, s46, 6554","s_lshr_b32 s47, s47, 16",
        "s_mul_i32 s33, s47, 10","s_sub_u32 s33, s46, s33",
        "s_mul_i32 s88, s47, 40","s_lshl_b32 s89, s33, 2","s_add_u32 s88, s88, s89","s_lshl_b32 s88, s88, 10",
        "s_lshl_b32 s33, s33, 7","s_sub_u32 s89, s47, 48","s_cmp_ge_u32 s47, 48","s_cselect_b32 s47, s89, s47",
        "s_cselect_b32 s80, s8, s16","s_cselect_b32 s81, s9, s17","s_cselect_b32 s90, 8, 4","s_cselect_b32 s91, 4, 8",
        "s_mul_i32 s47, s47, 40960","s_add_u32 s47, s47, s33","s_add_u32 s80, s80, s47","s_addc_u32 s81, s81, 0",
        "s_mov_b32 s82, %d"%(31*1280+128),"s_mov_b32 s83, 0x20000",
        "s_add_u32 s84, s18, %d"%W2_OFF,"s_addc_u32 s85, s19, 0","s_mov_b32 s86, %d"%(68*40*1024),"s_mov_b32 s87, 0x20000",
        "s_mov_b32 s89, s46",
        "v_lshrrev_b32 v4, 3, v0","v_and_b32 v5, 7, v0","v_lshlrev_b32 v5, 4, v5","s_movk_i32 s33, 1280","v_mad_u32_u24 v4, v4, s33, v5",
        "v_lshrrev_b32 v5, 5, v0","v_bfe_u32 v6, v0, 4, 1","v_mul_u32_u24 v6, s90, v6","v_lshl_add_u32 v5, v5, 4, v6","v_bfe_u32 v6, v0, 2, 2",
        "v_add_u32 v5, v5, v6","v_lshlrev_b32 v5, 7, v5","v_and_b32 v6, 3, v0","v_lshl_add_u32 v5, v6, 3, v5","s_lshl_b32 s33, s24, 12",
        "s_add_u32 s92, s33, 147456","v_add_u32 v5, s92, v5","s_lshl_b32 s33, s91, 7","v_add_u32 v6, s33, v5","v_lshlrev_b32 v7, 4, v0"]
    g("\n".join(w2))
    LS=g.label("K1S")
    g(f"s_cmp_ge_u32 s89, 680\ns_cbranch_scc1 {LS}")
    for t in range(4):
        g(f"s_add_u32 m0, s92, {t*1024}\ns_mov_b32 s33, {t*8*1280}")
        g.vmem("buffer_load_dwordx4 v4, s[80:83], s33 offen lds",'maybe')
    g(f"{LS}:")
    run(120,200,corr(2)+GAP+epi_qkv(2,"s44","s40"),2)
    for op in corr(0)+corr(1): emit_side(op)
    LS=g.label("K1S")
    g(f"s_cmp_ge_u32 s89, 680\ns_cbranch_scc1 {LS}")
    g("s_waitcnt vmcnt(0)")
    for nb in range(4):
        g(f"ds_read_b64_tr_b16 {vr(XR+4*nb,2)}, v5 offset:{nb*32}\nds_read_b64_tr_b16 {vr(XR+4*nb+2,2)}, v6 offset:{nb*32}")
    g("s_waitcnt lgkmcnt(0)")
    for nb in range(4): g(f"buffer_store_dwordx4 {vr(XR+4*nb,4)}, v7, s[84:87], s88 offen offset:{nb*1024}{st_mod}")
    g(f"{LS}:\ns_nop 7\ns_nop 7")
    for op in epi_ffn("s41"): emit_side(op)
```

```python
from gfw import *
S=96; O=80; VOFF=36864; BS=3072
def k2_body(g, st_mod="", ld_mod=""):
    g(f"""s_load_dwordx2 s[18:19], s[0:1], 72
    v_mov_b32 v1, v0
    v_lshrrev_b32 v2, 6, v0
    v_and_b32 v0, 63, v0
    v_readfirstlane_b32 s24, v2
    s_and_b32 s46, s2, 7
    s_lshr_b32 s47, s2, 3
    s_and_b32 s28, s47, 1
    s_lshl_b32 s46, s46, 1
    s_add_u32 s28, s28, s46
    s_lshr_b32 s27, s47, 1
    s_and_b32 s25, s24, 3
    s_lshr_b32 s26, s24, 2
    v_lshrrev_b32 v2, 4, v0
    v_lshlrev_b32 v3, 1, v2
    v_and_b32 v4, 15, v0
    v_xor_b32 v3, v3, v4
    v_lshlrev_b32 v3, 4, v3
    v_lshl_add_u32 v8, v2, 8, v3
    v_xor_b32 v9, 0x80, v8
    s_lshl_b32 s29, s27, 2
    s_sub_u32 s29, s29, 8
    s_mul_i32 s30, s28, 2560
    s_waitcnt lgkmcnt(0)""")
    srd(g,72,"s18","s19",None,64*QKV_TB)
    srd(g,76,"s18","s19",HO_OFF,64*HO_TB)
    for j in range(3):
        g(f"""s_add_u32 s33, s24, {8*j}
        s_mul_i32 s34, s33, {BS}
        s_mov_b32 m0, s34
        s_sub_u32 s34, s33, 12
        s_cmp_ge_u32 s33, 12
        s_cselect_b32 s33, s34, s33
        s_cselect_b32 s34, 2, 1
        s_mul_i32 s34, s34, 40960
        s_add_i32 s33, s33, s29
        s_max_i32 s33, s33, 0
        s_mul_i32 s33, s33, {QKV_TB}
        s_add_u32 s33, s33, s34
        s_add_u32 s33, s33, s30""")
        g.vmem(f"buffer_load_dwordx4 v8, s[72:75], s33 offen lds{ld_mod}")
        g.vmem(f"buffer_load_dwordx4 v9, s[72:75], s33 offen offset:1024 lds{ld_mod}")
        g("s_mov_b32 exec_hi, 0")
        g.vmem(f"buffer_load_dwordx4 v8, s[72:75], s33 offen offset:2048 lds{ld_mod}")
        g("s_mov_b32 exec_hi, -1")
    g(f"""v_lshrrev_b32 v2, 5, v0
    v_and_b32 v3, 31, v0
    s_lshl_b32 s31, s27, 2
    s_add_u32 s31, s31, s25
    s_mul_i32 s33, s31, {QKV_TB}
    s_add_u32 s33, s33, s30
    s_mul_i32 s32, s26, 1280
    s_add_u32 s33, s33, s32
    v_lshlrev_b32 v4, 3, v3
    v_lshl_add_u32 v5, v2, 9, v4""")
    g.vmem(f"buffer_load_dwordx2 v[16:17], v5, s[72:75], s33 offen{ld_mod}")
    g.vmem(f"buffer_load_dwordx2 v[18:19], v5, s[72:75], s33 offen offset:256{ld_mod}")
    g.vmem(f"buffer_load_dwordx2 v[20:21], v4, s[72:75], s33 offen offset:1024{ld_mod}")
    g(f"""v_lshrrev_b32 v6, 4, v1
    v_mul_u32_u24 v6, {BS}, v6
    v_and_b32 v7, 15, v1
    v_lshl_add_u32 v6, v7, 4, v6
    v_mov_b32 v24, 0x3f803f80
    v_mov_b32 v25, v24
    v_mov_b32 v26, v24
    v_mov_b32 v27, v24
    v_cmp_gt_u32 vcc, 192, v1
    s_mov_b64 exec, vcc
    ds_write_b128 v6, v[24:27] offset:{VOFF+2560}
    s_mov_b64 exec, -1
    v_subrev_u32 v7, 192, v1
    v_mul_u32_u24 v6, {BS}, v7
    v_add_u32 v24, s29, v7
    v_mov_b32 v25, 0x3f80
    v_cmp_gt_i32 vcc, 0, v24
    s_nop 1
    v_cndmask_b32 v24, 0, v25, vcc
    v_mov_b32 v25, 0
    v_cmp_gt_u32 vcc, 12, v7
    s_mov_b64 exec, vcc
    ds_write_b64 v6, v[24:25] offset:2560
    s_mov_b64 exec, -1""")
    g(f"""s_mul_i32 s32, s26, 5
    s_mul_i32 s34, s25, {BS}
    v_lshrrev_b32 v6, 1, v3
    v_and_b32 v7, 1, v3
    v_lshlrev_b32 v7, 3, v7
    v_add_u32 v7, s34, v7""")
    for (d,expr) in ((10,"v_lshl_add_u32 v13, v2, 1, s32"),(11,"v_add_u32 v13, 1, v13"),(12,"v_add_u32 v13, 4, s32")):
        if d==12: g("v_mov_b32 v13, 4\nv_add_u32 v13, s32, v13")
        else: g(expr)
        g(f"""v_and_b32 v14, 7, v13
        v_lshlrev_b32 v14, 1, v14
        v_xor_b32 v14, v14, v6
        v_lshl_add_u32 v14, v14, 4, v7
        v_lshl_add_u32 v{d}, v13, 8, v14""")
    g(f"""s_add_u32 s35, s34, 2560
    v_mov_b32 v13, s35
    v_cmp_lt_u32 vcc, 31, v0
    s_nop 1
    v_cndmask_b32 v12, v12, v13, vcc""")
    g(f"""v_bfe_u32 v6, v0, 4, 1
    v_and_b32 v7, 3, v0
    v_lshl_add_u32 v6, v6, 2, v7
    v_add_u32 v7, s32, v6
    v_and_b32 v13, 7, v7
    v_lshlrev_b32 v13, 1, v13
    v_bfe_u32 v14, v0, 3, 1
    v_lshl_add_u32 v14, v2, 1, v14
    v_xor_b32 v13, v13, v14
    v_lshlrev_b32 v13, 4, v13
    v_bfe_u32 v14, v0, 2, 1
    v_lshl_add_u32 v13, v14, 3, v13
    v_lshlrev_b32 v7, 8, v7
    v_mov_b32 v14, 2560
    v_cmp_lt_u32 s[36:37], 4, v6
    s_add_u32 s35, s34, {VOFF}
    s_nop 0
    v_cndmask_b32 v7, v7, v14, s[36:37]
    v_add3_u32 v28, v7, v13, s35
    v_xor_b32 v29, 64, v28
    v_xor_b32 v30, 128, v28
    v_xor_b32 v31, 192, v28""")
    g("v_lshlrev_b32 v6, 2, v2\nv_sub_u32 v6, v3, v6\nv_mov_b32 v7, 0xffff\nv_mov_b32 v13, 0xffff0000")
    for r in range(16): g(f"v_cmp_le_i32 s[{40+2*r}:{41+2*r}], {8*(r//4)+r%4}, v6")
    for k in range(8):
        g(f"v_cndmask_b32 v14, 0, v7, s[{40+4*k}:{41+4*k}]\nv_cndmask_b32 v15, 0, v13, s[{42+4*k}:{43+4*k}]\nv_or_b32 v{64+k}, v14, v15")
    g(f"""s_mul_i32 s33, s28, 10
    s_add_u32 s33, s33, s32
    v_add_u32 v6, s33, v2
    v_lshrrev_b32 v7, 1, v6
    v_and_b32 v6, 1, v6
    v_lshlrev_b32 v6, 3, v6
    v_lshl_add_u32 v6, v7, 9, v6
    v_lshl_add_u32 v6, v3, 4, v6
    s_mul_i32 s33, s31, {HO_TB}
    s_add_u32 s33, s33, {192*512}
    v_add_u32 v15, s33, v6
    v_mov_b32 v22, 0
    v_mov_b32 v23, 0""")
    KF=[32,40,48]
    for k in KF: g(f"v_mov_b32 v{k+6}, 0\nv_mov_b32 v{k+7}, 0")
    g.vwait0()
    g("v_mov_b32 v6, 0xf149\nv_cndmask_b32 v20, v20, v6, vcc\nv_cndmask_b32 v21, v21, v22, vcc")
    g.lwait0(); g("s_barrier")
    kt={}
    order=[0,8,1,2,3,4,5,6,7]
    def kread(i):
        if i>=9: return
        t=order[i]; k=KF[i%3]
        g.ds(f"ds_read_b64 {vr(k,2)}, v10 offset:{t*BS}"); g.ds(f"ds_read_b64 {vr(k+2,2)}, v11 offset:{t*BS}")
        kt[i]=g.ds(f"ds_read_b64 {vr(k+4,2)}, v12 offset:{t*BS}")
    def mx(t,first):
        b=S+16*t; o=[]
        for k in range(0,16,2):
            a=f"v{13+(k//2)%2}"
            if first and k<4: o.append(f"v_max_f32 {a}, v{b+k}, v{b+k+1}")
            else: o.append(f"v_max3_f32 {a}, v{b+k}, v{b+k+1}, {a}")
        return o
    for i in range(3): kread(i)
    for i in range(9):
        t=order[i]; k=KF[i%3]; g.lwait(kt[i])
        g(f"v_mfma_f32_32x32x16_bf16 {vr(S+16*t,16)}, {vr(k,4)}, v[16:19], 0")
        g(f"v_mfma_f32_32x32x16_bf16 {vr(S+16*t,16)}, {vr(k+4,4)}, v[20:23], {vr(S+16*t,16)}")
        kread(i+3)
        if i==3:
            for r in range(16): g(f"v_cndmask_b32 v{S+128+r}, v{S+r}, v{S+128+r}, s[{40+2*r}:{41+2*r}]")
            g("\n".join(mx(8,True)))
        elif i>3: g("\n".join(mx(order[i-2],False)))
    VF=[32,36,40,44,48,52]; vt={}
    seq=[(t,m) for t in [1,2,3,4,5,6,7,8,0] for m in range(2)]
    def vread(i):
        if i>=18: return
        t,m=seq[i]; r=VF[i%6]
        g.ds(f"ds_read_b64_tr_b16 {vr(r,2)}, v{28+2*m} offset:{t*BS}")
        vt[i]=g.ds(f"ds_read_b64_tr_b16 {vr(r+2,2)}, v{29+2*m} offset:{t*BS}")
    g("\n".join(mx(6,False)));
    for i in range(6): vread(i)
    g("s_nop 4"); g("\n".join(mx(7,False)))
    g("""v_max_f32 v13, v13, v14
    v_mov_b32 v14, v13
    s_nop 1
    v_permlane32_swap_b32 v13, v14
    v_max_f32 v12, v13, v14""")
    def soft(t,m):
        b=S+16*t+8*m; o=[]
        for k in range(0,8,2): o.append(f"v_pk_add_f32 {vr(b+k,2)}, {vr(b+k,2)}, v[12:13] op_sel_hi:[1,0] neg_lo:[0,1] neg_hi:[0,1]")
        for k in range(8): o.append(f"v_exp_f32 v{b+k}, v{b+k}")
        for k in range(4): o.append(f"v_cvt_pk_bf16_f32 v{b+k}, v{b+2*k}, v{b+2*k+1}")
        return o
    pend=None
    def pv(i):
        t,m=seq[i]; g.lwait(vt[i])
        g(f"v_mfma_f32_32x32x16_bf16 {vr(O,16)}, {vr(VF[i%6],4)}, {vr(S+16*t+8*m,4)}, {'0' if i==0 else vr(O,16)}")
        vread(i+6)
    for i in range(16):
        t,m=seq[i]; ops=soft(t,m)
        g("\n".join(ops[:4]))
        if i>0: pv(i-1)
        g("\n".join(ops[4:]))
        if t==8:
            for k in range(4):
                b=S+128+8*m+k
                g(f"v_and_b32 v{b+4}, v{64+4*m+k}, v{b}\nv_xor_b32 v{S+8*m+k}, v{b+4}, v{b}\nv_mov_b32 v{b}, v{b+4}")
    g("s_nop 1")
    for i in (15,16,17): pv(i)
    g("s_nop 7\ns_nop 3\n"+f"v_rcp_f32 v12, v{O+12}\ns_nop 0")
    for gq in range(3):
        r=O+4*gq
        g(f"v_pk_mul_f32 {vr(r,2)}, {vr(r,2)}, v[12:13] op_sel_hi:[1,0]\nv_pk_mul_f32 {vr(r+2,2)}, {vr(r+2,2)}, v[12:13] op_sel_hi:[1,0]")
        g(f"v_cvt_pk_bf16_f32 v{r}, v{r}, v{r+1}\nv_cvt_pk_bf16_f32 v{r+1}, v{r+2}, v{r+3}")
        if gq==2: g("s_mov_b32 exec_hi, 0")
        g.vmem(f"buffer_store_dwordx2 {vr(r,2)}, v15, s[76:79], 0 offen offset:{gq*512}{st_mod}",'st')
    g("s_mov_b32 exec_hi, -1")
```

```python
from gfw import *
ACC=176; NST=4; FR=32; PITCH=336
def k3_body(g, ld_mod=""):
    g(f"""s_load_dwordx2 s[4:5], s[0:1], 0
    s_load_dwordx2 s[20:21], s[0:1], 56
    s_load_dwordx2 s[18:19], s[0:1], 72
    v_mov_b32 v1, v0
    v_lshrrev_b32 v2, 6, v0
    v_and_b32 v0, 63, v0
    v_readfirstlane_b32 s24, v2
    s_and_b32 s46, s2, 7
    s_lshr_b32 s47, s2, 3
    s_lshr_b32 s27, s46, 1
    s_lshl_b32 s27, s27, 3
    s_and_b32 s33, s47, 7
    s_add_u32 s27, s27, s33
    s_and_b32 s28, s46, 1
    s_lshl_b32 s28, s28, 2
    s_lshr_b32 s33, s47, 3
    s_add_u32 s28, s28, s33
    v_lshlrev_b32 v4, 4, v0
    v_add_u32 v5, 4096, v4
    v_lshrrev_b32 v2, 4, v0
    v_and_b32 v3, 15, v0
    v_lshlrev_b32 v6, 4, v3
    v_lshl_add_u32 v6, v2, 9, v6
    v_add_u32 v7, {HO_TB}, v6
    s_mul_i32 s30, s24, 40960
    s_mul_i32 s33, s28, 5120
    s_add_u32 s30, s30, s33
    s_lshl_b32 s31, s24, 11
    s_mul_i32 s33, s27, {2*HO_TB}
    s_add_u32 s33, s33, {HO_OFF}
    s_waitcnt lgkmcnt(0)""")
    srd(g,76,"s18","s19","s33",2*HO_TB)
    srd(g,84,"s18","s19",W2_OFF,68*40*1024)
    tk={}
    def loads(j):
        if j>=17: return
        b=FR+36*(j%NST)
        for tg in range(4): g.vmem(f"buffer_load_dwordx4 {vr(b+20+4*tg,4)}, v{6+tg//2}, s[76:79], s31 offen offset:{(tg%2)*256}{ld_mod}")
        for nb in range(5):
            tk[j,nb]=g.vmem(f"buffer_load_dwordx4 {vr(b+4*nb,4)}, v{4+nb//4}, s[84:87], s30 offen offset:{(nb%4)*1024}{ld_mod}")
        g(f"s_add_u32 s30, s30, {4*40960}\ns_add_u32 s31, s31, 8192")
    for j in range(NST): loads(j)
    g(f"s_mul_i32 s33, s27, {64*1280}\ns_mul_i32 s34, s28, 160\ns_add_u32 s33, s33, s34")
    srd(g,48,"s4","s5","s33",63*1280+160); srd(g,52,"s20","s21","s33",63*1280+160)
    for k in range(3):
        g(f"""v_add_u32 v14, {256*k}, v1
        v_mul_u32_u24 v15, 6554, v14
        v_lshrrev_b32 v15, 16, v15
        v_mul_u32_u24 v16, 10, v15
        v_sub_u32 v16, v14, v16
        v_mul_u32_u24 v{8+k}, 1280, v15
        v_lshl_add_u32 v{8+k}, v16, 4, v{8+k}
        v_mul_u32_u24 v{11+k}, {PITCH}, v15
        v_lshl_add_u32 v{11+k}, v16, 5, v{11+k}""")
    g(f"""s_mul_i32 s33, s24, {64*PITCH}
    v_mul_u32_u24 v14, {PITCH}, v3
    v_lshl_add_u32 v14, v2, 4, v14
    v_add_u32 v14, s33, v14""")
    for j in range(17):
        b=FR+36*(j%NST)
        for nb in range(5):
            g.vwait(tk[j,nb])
            for tg in range(4):
                a=ACC+4*(nb*4+tg)
                g(f"v_mfma_f32_16x16x32_bf16 {vr(a,4)}, {vr(b+4*nb,4)}, {vr(b+20+4*tg,4)}, {'0' if j==0 else vr(a,4)}")
        loads(j+NST)
        if j==13:
            for k in range(3): xt=g.vmem(f"buffer_load_dwordx4 {vr(16+4*k,4)}, v{8+k}, s[48:51], 0 offen")
    g("s_nop 7")
    for nb in range(5):
        for tg in range(4):
            g.ds(f"ds_write_b128 v14, {vr(ACC+4*(nb*4+tg),4)} offset:{tg*16*PITCH+nb*64}")
    g.lwait0(); g("s_barrier")
    for k in range(3):
        for w in range(4):
            for h in range(2): g.ds(f"ds_read_b128 {vr(32+32*k+8*w+4*h,4)}, v{11+k} offset:{w*64*PITCH+16*h}")
    g.vwait(xt)
    for k in range(3):
        g.lwait(g.lg-1-(2-k)*8)
        b=32+32*k
        for w in range(1,4):
            for q in range(0,8,2): g(f"v_pk_add_f32 {vr(b+q,2)}, {vr(b+q,2)}, {vr(b+8*w+q,2)}")
        for q in range(4):
            x=16+4*k+q
            g(f"v_lshlrev_b32 v28, 16, v{x}\nv_and_b32 v29, 0xffff0000, v{x}\nv_pk_add_f32 {vr(b+2*q,2)}, {vr(b+2*q,2)}, v[28:29]")
            g(f"v_cvt_pk_bf16_f32 v{x}, v{b+2*q}, v{b+2*q+1}")
        g.vmem(f"buffer_store_dwordx4 {vr(16+4*k,4)}, v{8+k}, s[52:55], 0 offen",'st')
```

```python
import sys
from gfw import *
import k1,k2,k3
N="parallel_sum__sliding_block__glu_gated_bilinear__prompt"
hdr=open(f"cdna_kernels/{N}.s.ref").read().split("; @launch")[0]
ks=[("k1_kernel",k1.k1_body,512,159744),("k2_kernel",k2.k2_body,512,73728),(N+"_kernel",k3.k3_body,256,4*64*336+8192)]
o=[hdr.rstrip("\n")]
for n,f,b,l in ks: o.append(f"; @launch kernel={n} grid=(256,1,1) block=({b},1,1) lds={l}")
o.append('.amdgcn_target "amdgcn-amd-amdhsa--gfx950"\n.text')
for i,(n,f,b,l) in enumerate(ks):
    g=G(); g.lab=1000*i
    g(f"s_cmp_ge_u32 s2, 256\ns_cbranch_scc1 END_{i}"); f(g); g(f"END_{i}:\ns_endpgm")
    o.append(khead(n)); o.append(g.text())
o.append('.section .rodata,"a"')
for n,f,b,l in ks: o.append(kdesc(n))
open(sys.argv[1],"w").write("\n".join(o)+"\n")
```

```python
class G:
    def __init__(s):
        s.L=[]; s.vm=[]; s.lg=0; s.vm_done=-1; s.lg_done=-1; s.lab=0
    def __call__(s,t):
        for l in t.split("\n"):
            l=l.strip()
            if l: s.L.append("    "+l if not l.endswith(":") else l)
    def label(s,p="L"):
        s.lab+=1; return f"{p}_{s.lab}"
    def vmem(s,t,kind='ld'):
        s(t); s.vm.append(kind); return len(s.vm)-1
    def vwait(s,tok):
        if tok<=s.vm_done: return
        n=sum(1 for k in s.vm[tok+1:] if k in ('ld','st'))
        assert s.vm[tok]=='ld'
        n=min(n,63)
        s(f"s_waitcnt vmcnt({n})"); s.vm_done=tok
    def vwait0(s):
        s("s_waitcnt vmcnt(0)"); s.vm_done=len(s.vm)-1
    def ds(s,t):
        s(t); s.lg+=1; return s.lg-1
    def lwait(s,tok):
        if tok<=s.lg_done: return
        n=min(s.lg-1-tok,15)
        s(f"s_waitcnt lgkmcnt({n})"); s.lg_done=s.lg-1-n
    def lwait0(s):
        s("s_waitcnt lgkmcnt(0)"); s.lg_done=s.lg-1
    def state(s): return (list(s.vm),s.lg,s.vm_done,s.lg_done)
    def restore(s,st): s.vm=list(st[0]); s.lg,s.vm_done,s.lg_done=st[1:]
    def text(s): return "\n".join(s.L)
def vr(a,n=1): return f"v{a}" if n==1 else f"v[{a}:{a+n-1}]"
def sr(a,n=1): return f"s{a}" if n==1 else f"s[{a}:{a+n-1}]"
def srd(g,d,lo,hi,off,size):
    if off is None: g(f"s_mov_b32 s{d}, {lo}\ns_mov_b32 s{d+1}, {hi}")
    else: g(f"s_add_u32 s{d}, {lo}, {off}\ns_addc_u32 s{d+1}, {hi}, 0")
    g(f"s_mov_b32 s{d+2}, {size}\ns_mov_b32 s{d+3}, 0x20000")
def khead(name): return f".globl {name}\n.p2align 8\n.type {name},@function\n{name}:"
def kdesc(name,nv=256,acc=None):
    return f""".p2align 6
.amdhsa_kernel {name}
  .amdhsa_next_free_vgpr {nv}
  .amdhsa_next_free_sgpr 102
  .amdhsa_accum_offset {acc or min(nv,256)}
  .amdhsa_group_segment_fixed_size 0
  .amdhsa_kernarg_size 80
  .amdhsa_user_sgpr_count 2
  .amdhsa_user_sgpr_kernarg_segment_ptr 1
  .amdhsa_system_sgpr_workgroup_id_x 1
.end_amdhsa_kernel"""
QKV_OFF=0; QKV_TB=122880
HO_OFF=0x800000; HO_TB=139264
W2_OFF=0x1200000; FL_OFF=0x1600000
QSCALE=(20**-0.5)*1.4426950408889634
import struct
def f32(x): return "0x%08x"%struct.unpack("<I",struct.pack("<f",x))[0]

import os
OPT=set(os.environ.get("OPT","").split(","))
TS_OFF=0x2000000
def stamp(g,i):
    if "ts" in OPT: g(f"s_memtime s[{94+0}:{95}]\ns_waitcnt lgkmcnt(0)\nv_writelane_b32 v{g.tsreg}, s94, {i}"); g.lg_done=g.lg-1
def stamp_init(g,reg):
    g.tsreg=reg
    if "ts" in OPT: g(f"v_mov_b32 v{reg}, 0")
def stamp_store(g,kid):
    if "ts" not in OPT: return
    g(f"""s_add_u32 s96, s18, {TS_OFF+kid*0x100000}
    s_addc_u32 s97, s19, 0
    s_mov_b32 s98, 0x100000
    s_mov_b32 s99, 0x20000
    s_lshl_b32 s94, s2, 3
    s_add_u32 s94, s94, s24
    s_lshl_b32 s94, s94, 8
    v_mbcnt_lo_u32_b32 v1, -1, 0
    v_mbcnt_hi_u32_b32 v1, -1, v1
    v_lshlrev_b32 v1, 2, v1
    s_nop 4
    buffer_store_dword v{g.tsreg}, v1, s[96:99], s94 offen""")

def rstamp(g,i):
    if "ts" in OPT: g(f"s_memrealtime s[94:95]\ns_waitcnt lgkmcnt(0)\nv_writelane_b32 v{g.tsreg}, s94, {i}"); g.lg_done=g.lg-1
STM=""
for o in OPT:
    if o.startswith("st="): STM=" "+o[3:].replace("+"," ")

FSH=int(os.environ.get("FSH","7"))
```

```python
from gfw import *
XR=96; ACC=[48,64,80]; WF=32; NWF=4
NB=9; EX=147456
def k1_body(g, st_mod=""):
    stamp_init(g,29); rstamp(g,62); stamp(g,0); st_mod=STM
    g("""s_load_dwordx4 s[4:7], s[0:1], 0
    s_load_dwordx2 s[8:9], s[0:1], 16
    s_load_dwordx4 s[12:15], s[0:1], 32
    s_load_dwordx2 s[16:17], s[0:1], 48
    s_load_dwordx2 s[18:19], s[0:1], 72""")
    codepf(g,84,"k1_kernel","A")
    g("""v_lshrrev_b32 v1, 6, v0
    v_and_b32 v0, 63, v0
    s_nop 0
    v_readfirstlane_b32 s24, v1
    s_and_b32 s46, s2, 7
    s_lshr_b32 s47, s2, 3
    s_and_b32 s27, s46, 1
    s_lshl_b32 s27, s27, 3
    s_and_b32 s33, s47, 7
    s_add_u32 s27, s27, s33
    s_lshr_b32 s28, s46, 1
    s_lshl_b32 s28, s28, 2
    s_lshr_b32 s33, s47, 3
    s_add_u32 s28, s28, s33
    s_and_b32 s25, s24, 3
    s_lshr_b32 s26, s24, 2
    s_lshl_b32 s30, s24, 10
    s_mov_b32 s45, 0x3f803f80""")
    g("""s_sub_u32 s46, s28, 8
    s_mul_i32 s47, s46, 3
    s_lshl_b32 s33, s28, 1
    s_cmp_ge_u32 s28, 8
    s_cselect_b32 s29, 1, 0
    s_cselect_b32 s34, s47, s33
    s_add_u32 s35, s34, s29
    s_cmp_ge_u32 s28, 6
    s_cselect_b32 s36, 22, 24
    s_add_u32 s36, s36, s28
    s_add_u32 s47, s47, 2
    s_add_u32 s33, s33, 1
    s_add_u32 s46, s46, 16
    s_cmp_ge_u32 s28, 8
    s_cselect_b32 s36, s47, s36
    s_cselect_b32 s37, s46, s33
    s_mov_b32 s46, 3072
    s_mov_b32 s47, 3840
    s_cselect_b32 s32, s47, s46""")
    g("""v_lshrrev_b32 v2, 3, v0
    s_lshl_b32 s33, s24, 3
    v_add_u32 v2, s33, v2
    v_and_b32 v3, 7, v0
    v_bfe_u32 v4, v2, 1, 3
    v_xor_b32 v4, v4, v3
    v_lshlrev_b32 v4, 4, v4
    s_movk_i32 s33, 1280
    v_mad_u32_u24 v8, v2, s33, v4
    v_bfe_u32 v4, v2, 1, 1
    v_lshlrev_b32 v4, 2, v4
    v_xor_b32 v4, v4, v3
    v_lshlrev_b32 v4, 4, v4
    v_mad_u32_u24 v9, v2, s32, v4
    s_mul_i32 s33, s27, 163840
    s_mul_i32 s38, s32, 639
    s_add_u32 s38, s38, 128
    s_lshl_b32 s32, s32, 6
    s_lshl_b32 s46, s34, 7
    s_lshl_b32 s47, s35, 7
    s_waitcnt lgkmcnt(0)""")
    srd(g,48,"s4","s5","s33",163840)
    g("""s_cmp_eq_u32 s29, 1
    s_cselect_b32 s52, s6, s12
    s_cselect_b32 s53, s7, s13
    s_cselect_b32 s56, s6, s14
    s_cselect_b32 s57, s7, s15""")
    srd(g,52,"s52","s53","s46","s38")
    srd(g,56,"s56","s57","s47","s38")
    g("""s_and_b32 s20, s28, 3
    s_mul_i32 s20, s20, 5
    s_lshr_b32 s20, s20, 1
    s_and_b32 s21, s27, 7
    s_add_u32 s20, s20, s21
    s_sub_u32 s21, s20, 10
    s_cmp_ge_u32 s20, 10
    s_cselect_b32 s20, s21, s20""")
    if "norot" in OPT: g("s_mov_b32 s20, 0")
    g("""s_mul_i32 s31, s20, s32
    s_mul_i32 s23, s32, 10
    s_mul_i32 s21, s20, %d
    s_mul_i32 s22, s20, %d
    s_lshl_b32 s20, s20, 7"""%(64*3840,64*3072))
    def adv(r,step,lim): g(f"s_add_u32 {r}, {r}, {step}\ns_cmp_eq_u32 {r}, {lim}\ns_cselect_b32 {r}, 0, {r}")
    items=[]
    for s in range(10): items+= [("x",s),("w0",s)]
    for s in range(5): items.append(("w1",s))
    for s in range(10): items.append(("w2",s))
    tok={}
    def issue(it):
        if it>=len(items): return
        kind,j=items[it]; base=(it%NB)*16384
        for t in range(2):
            g(f"s_add_u32 m0, s30, {base+t*8192}")
            if kind=="x":
                g(f"s_add_u32 s33, s20, {t*64*1280}"); a=("v8",48,"s33")
            elif kind=="w0":
                g("s_nop 0"); a=("v9",52+4*t,"s31")
            elif kind=="w1":
                g("s_nop 0"); a=("v8",60,"s21")
            else:
                g("s_nop 0"); a=("v9",64+4*t,"s22")
            tok[it]=g.vmem(f"buffer_load_dwordx4 {a[0]}, s[{a[1]}:{a[1]+3}], {a[2]} offen lds")
            if kind=="w1": adv("s21",64*3840,640*3840)
        if kind=="x": adv("s20",128,1280)
        if kind=="w0": adv("s31","s32","s23")
        if kind=="w2": adv("s22",64*3072,640*3072)
        if it==19:
            g("""v_lshrrev_b32 v8, 3, v0
            s_lshl_b32 s33, s24, 3
            v_add_u32 v8, s33, v8
            v_bfe_u32 v30, v8, 1, 1
            v_lshlrev_b32 v30, 2, v30
            v_and_b32 v9, 7, v0
            v_xor_b32 v30, v30, v9
            v_lshlrev_b32 v30, 4, v30
            v_mul_u32_u24 v9, 3072, v8
            v_mul_u32_u24 v8, 3840, v8
            v_add_u32 v9, v9, v30
            v_add_u32 v8, v8, v30""")
    NI=int(os.environ.get("NI","4"))
    for it in range(NI):
        issue(it)
        if it%2==1 and it<NI-1 and "ib" in OPT: g("s_barrier")
    g("s_cmp_eq_u32 s26, 0\ns_cselect_b64 vcc, 0, -1")
    g("s_lshl_b32 s46, s36, 7"); srd(g,60,"s6","s7","s46",639*3840+128)
    g("s_lshl_b32 s46, s37, 7"); srd(g,64,"s12","s13","s46",639*3072+128); srd(g,68,"s14","s15","s46",639*3072+128)
    if "pf" in OPT:
        g("s_mov_b64 s[88:89], s[48:49]\ns_mov_b64 s[90:91], s[50:51]\ns_movk_i32 s92, 128\ns_lshr_b32 s93, s32, 6")
        for w,(sd,p) in enumerate(((52,"s93"),(56,"s93"),(60,"3840"),(64,"3072"),(68,"3072"))):
            g(f"s_cmp_eq_u32 s24, {w}\ns_cselect_b64 s[88:89], s[{sd}:{sd+1}], s[88:89]\ns_cselect_b64 s[90:91], s[{sd+2}:{sd+3}], s[90:91]\ns_cselect_b32 s92, {p}, s92")
        g("""s_and_b32 s46, s27, 7
        s_mul_i32 s46, s46, 80
        s_and_b32 s47, s28, 3
        s_mul_i32 s47, s47, 320
        s_mul_i32 s33, s24, 107
        s_add_u32 s47, s47, s33
        s_sub_u32 s47, s47, 535
        s_cmp_lt_u32 s24, 5
        s_cselect_b32 s46, s46, s47
        s_movk_i32 s47, 106
        s_cselect_b32 s47, 79, s47
        v_add_u32 v12, 64, v0
        v_min_u32 v12, s47, v12
        v_add_u32 v13, s46, v0
        v_add_u32 v12, s46, v12
        v_mul_u32_u24 v13, s92, v13
        v_mul_u32_u24 v12, s92, v12""")
        g.vmem("buffer_load_dword v20, v13, s[88:91], 0 offen"); g.vmem("buffer_load_dword v21, v12, s[88:91], 0 offen")
    srd(g,72,"s18","s19",None,64*QKV_TB)
    srd(g,76,"s18","s19",HO_OFF,64*HO_TB)
    g(f"""s_lshl_b32 s38, s34, 12
    s_lshl_b32 s39, s35, 12
    s_lshl_b32 s40, s36, 12
    s_lshl_b32 s41, s37, 12
    s_mov_b32 s46, {f32(QSCALE)}
    s_cmp_lt_u32 s34, 10
    s_cselect_b32 s42, s46, 1.0
    s_cmp_lt_u32 s35, 10
    s_cselect_b32 s43, s46, 1.0
    s_cmp_lt_u32 s36, 10
    s_cselect_b32 s44, s46, 1.0""")
    g("""v_lshrrev_b32 v12, 5, v0
    v_bfe_u32 v13, v0, 2, 2
    v_lshl_add_u32 v1, v12, 3, v13
    v_lshlrev_b32 v1, 7, v1
    v_lshrrev_b32 v13, 1, v13
    v_xor_b32 v13, s26, v13
    v_lshl_add_u32 v1, v13, 6, v1
    v_bfe_u32 v13, v0, 4, 1
    v_lshl_add_u32 v1, v13, 5, v1
    v_and_b32 v13, 3, v0
    v_lshl_add_u32 v1, v13, 3, v1
    s_lshl_b32 s46, s26, 1
    s_xor_b32 s93, s46, s25
    s_lshl_b32 s46, s93, 11
    v_add_u32 v1, s46, v1
    v_xor_b32 v2, 0x800, v1
    v_xor_b32 v3, 0x1000, v1
    v_xor_b32 v25, 0x1800, v1""")
    g("""v_and_b32 v31, 31, v0
    v_bfe_u32 v13, v0, 1, 3
    v_xor_b32 v13, v13, v12
    v_lshlrev_b32 v13, 4, v13
    s_lshl_b32 s46, s25, 12
    v_lshl_add_u32 v4, v31, 7, v13
    v_add_u32 v4, s46, v4
    s_lshl_b32 s46, s93, 5
    v_xor_b32 v4, s46, v4
    v_xor_b32 v5, 32, v4
    v_xor_b32 v6, 64, v4
    v_xor_b32 v7, 96, v4""")
    g(f"""s_lshl_b32 s46, s27, 2
    s_add_u32 s46, s46, s25
    s_mul_i32 s47, s46, {QKV_TB}
    s_lshl_b32 s33, s26, 11
    s_add_u32 s47, s47, s33
    v_lshlrev_b32 v26, 3, v31
    v_lshl_add_u32 v26, v12, 8, v26
    v_add_u32 v26, s47, v26
    s_mul_i32 s47, s46, {HO_TB}
    s_add_u32 s47, s47, s33
    v_lshlrev_b32 v27, 4, v31
    v_lshl_add_u32 v27, v12, 9, v27
    v_add_u32 v27, s47, v27
    v_mov_b32 v10, 0
    v_mov_b32 v11, 0
    v_lshrrev_b32 v16, 4, v0
    v_xor_b32 v16, v16, v0
    v_and_b32 v16, 1, v16
    v_subrev_u32 v16, 1, v16
    v_and_b32 v16, s45, v16
    v_mov_b32 v17, v16
    v_mov_b32 v18, v16
    v_mov_b32 v19, v16
""")
    g("""s_mov_b32 s45, 0x3f803f80
    s_mov_b32 s93, 0xffff0000
    s_lshl_b32 s46, s24, 8
    s_add_u32 s46, s46, s2
    s_mul_i32 s47, s46, 6554
    s_lshr_b32 s47, s47, 16
    s_mul_i32 s33, s47, 10
    s_sub_u32 s33, s46, s33
    s_mul_i32 s88, s47, 40
    s_lshl_b32 s89, s33, 2
    s_add_u32 s88, s88, s89
    s_lshl_b32 s88, s88, 10
    s_lshl_b32 s33, s33, 7
    s_sub_u32 s89, s47, 48
    s_cmp_ge_u32 s47, 48
    s_cselect_b32 s47, s89, s47
    s_cselect_b32 s80, s8, s16
    s_cselect_b32 s81, s9, s17
    s_cselect_b32 s90, 8, 4
    s_cselect_b32 s91, 4, 8
    s_lshl_b32 s91, s91, 7
    s_mul_i32 s47, s47, 40960
    s_add_u32 s47, s47, s33
    s_add_u32 s80, s80, s47
    s_addc_u32 s81, s81, 0
    s_mov_b32 s82, %d
    s_mov_b32 s83, 0x20000
    s_mov_b32 s89, s46
    s_lshl_b32 s33, s24, 12
    s_add_u32 s92, s33, %d
    s_lshl_b32 s46, s26, 10
    s_add_u32 s46, s46, %d
    v_and_b32 v31, 31, v0
    v_lshl_add_u32 v31, v31, 4, s46
    s_lshl_b32 s3, s25, 2
    s_add_u32 s3, s3, s46
    s_lshl_b32 s10, s25, 10
    s_add_u32 s10, s10, %d
    s_lshl_b32 s11, s26, 9"""%(31*1280+128,(35%NB)*16384,EX,EX+6144))
    srd(g,84,"s18","s19",W2_OFF,68*40*1024)
    CS={0:20,1:12,2:20}
    WA=[1,2,3,25]; wbase=[0,0,0,0]
    def info(n):
        if n<80: return (n//8,(n%8)//2,n%2,4*(n//8)+(n%8)//2,n%2,n<2)
        if n<120:
            m=n-80; return (n//8,m%4,(m%8)//4,m,2,m==0)
        m=n-120; return (n//8,(m%8)//2,m%2,4*(m//8)+(m%8)//2,m%2,m<2)
    def isd(n):
        p=n%8
        return 0 if p==0 else (1 if p==(4 if 80<=n<120 else 5) else None)
    freg={}; cnt=0
    for n in range(200):
        freg[n]=WF+4*(cnt%NWF); cnt+=1
    def step_items(s): return [2*s,2*s+1] if s<10 else [10+s]
    ftok={}; xtok={}; nxt=[NI]; prebar=[]
    def w2dma():
        LS=g.label("K1S")
        g(f"s_cmp_ge_u32 s89, 680\ns_cbranch_scc1 {LS}")
        for t in range(4):
            g(f"s_add_u32 m0, s92, {t*1024}\ns_mov_b32 s33, {t*8*1280}")
            g.vmem("buffer_load_dwordx4 v4, s[80:83], s33 offen lds",'maybe')
        g(f"{LS}:")
    BM=int(os.environ.get("BM","3")); pend=[]
    def burst(lst,br,keep):
        if not lst: return
        L=g.label("K1B"); st=g.state(); tk0=dict(tok)
        g(f"{br} {L}")
        for it in lst:
            if it==35: w2dma()
            else: issue(it)
        g(f"{L}:")
        if not keep: g.vm=st[0]; tok.clear(); tok.update(tk0)
    def reads(n):
        if n>200: return
        if n%8==0:
            s=n//8
            if "pp" in OPT: burst(pend,"s_cbranch_vccz",True); pend.clear()
            if n==200: return
            while prebar: g.lwait(prebar.pop())
            if "early" in OPT: g.lwait0()
            g.vwait(tok[step_items(s)[-1]])
            g("s_barrier")
            if s in (0,10,15,20): stamp(g,1+s//5)
            if "pp" in OPT:
                allowed=NB+sum(len(step_items(q)) for q in range(s if "early" in OPT else s-1))
                while nxt[0]<allowed and nxt[0]<=35 and len(pend)<BM: pend.append(nxt[0]); nxt[0]+=1
                burst(pend,"s_cbranch_vccnz",False)
        s,i,sub,ks,a,first=info(n)
        if n<80 and n%2==0:
            base=((2*s)%NB)*16384
            if base<65536: xtok[ks]=g.ds(f"ds_read_b128 {vr(XR+4*ks,4)}, v{4+i} offset:{base}")
            else:
                g(f"v_add_u32 v30, {base}, v{4+i}"); xtok[ks]=g.ds(f"ds_read_b128 {vr(XR+4*ks,4)}, v30")
        off=(step_items(s)[-1]%NB)*16384
        if not (0<=off-wbase[i]<=49152):
            g(f"v_add_u32 v{WA[i]}, {(off-wbase[i])&0xffffffff}, v{WA[i]}"); wbase[i]=off
        off=off-wbase[i]+sub*8192; r=freg[n]
        g.ds(f"ds_read_b64_tr_b16 {vr(r,2)}, v{WA[i]} offset:{off}")
        ftok[n]=g.ds(f"ds_read_b64_tr_b16 {vr(r+2,2)}, v{WA[i]} offset:{off+512}")
        allowed=NB+sum(len(step_items(q)) for q in range(s if 'early' in OPT else s-1))
        if 'pp' not in OPT and n%2==1 and nxt[0]<allowed and nxt[0]<=35:
            if nxt[0]==35: w2dma()
            else: issue(nxt[0])
            nxt[0]+=1
    def cs_put(a):
        def f():
            g("v_and_b32 v30, 0x31, v0\nv_mul_u32_u24 v30, 0x104, v30\nv_and_b32 v30, 0x1c0, v30\nv_add_u32 v30, s3, v30\ns_nop 4") if a!=1 else None
            for j in range(4): prebar.append(g.ds(f"ds_write_b32 v30, v{CS[a]+j} offset:{a*2048+16*j}"))
        return [("f",f)]
    tk={}
    def corr(a,T):
        return [("f",lambda: tk.__setitem__(a,g.ds(f"ds_read_b128 {vr(T,4)}, v31 offset:{a*2048}"))),None,None,None,None,None,None,
                ("f",lambda: g.lwait(tk[a])),f"v_add_f32 v{T}, v{T}, v{T+1}",f"v_add_f32 v{T+2}, v{T+2}, v{T+3}",f"v_add_f32 v{T}, v{T}, v{T+2}",
                f"v_cvt_pk_bf16_f32 v{T+2}, v{T}, v{T}",f"v_and_b32 v{T+2}, s93, v{T+2}",f"v_sub_f32 v{T+3}, v{T}, v{T+2}",
                f"v_cvt_pk_bf16_f32 v{T+2}, v{T}, v{T+3}\nv_cvt_pk_bf16_f32 v{T+3}, v{T}, v{T+3}\ns_nop 1\n"
                f"v_mfma_f32_32x32x8bf16_1k {vr(ACC[a],16)}, {vr(T+2,2)}, v[10:11], {vr(ACC[a],16)}"]
    st_put=[("f",lambda: (g("v_lshl_add_u32 v30, v0, 3, s10\nv_add_u32 v30, s11, v30"),prebar.append(g.ds("ds_write_b64 v30, v[10:11]"))))]
    stats=[("f",lambda: (g("v_lshl_add_u32 v30, v0, 3, s10\nv_add_u32 v30, s11, v30\nv_xor_b32 v30, 512, v30"),tk.__setitem__('s',g.ds("ds_read_b64 v[4:5], v30")))),
           None,None,None,None,None,None,("f",lambda: g.lwait(tk['s'])),
           "v_add_f32 v14, v10, v4","v_add_f32 v15, v11, v5",
           "v_mov_b32 v4, v14","v_mov_b32 v5, v15","s_nop 1\nv_permlane32_swap_b32 v14, v4\nv_permlane32_swap_b32 v15, v5",
           "v_add_f32 v14, v14, v4","v_add_f32 v15, v15, v5",f"v_mul_f32 v14, {f32(-1/640)}, v14",f"v_mul_f32 v15, {f32(1/640)}, v15",
           "v_fma_f32 v15, -v14, v14, v15","v_max_f32 v15, 0, v15","v_mul_f32 v14, 0.5, v14",f"v_add_f32 v15, {f32(1e-5)}, v15","v_rsq_f32 v24, v15",
           "v_cvt_pk_bf16_f32 v10, v14, v14","v_and_b32 v4, s93, v10","v_sub_f32 v4, v14, v4","v_cvt_pk_bf16_f32 v11, v4, v4",
           "v_mul_f32 v28, v24, v24"]
    def epi_qkv(a,ssc,sso,T=14):
        A=ACC[a]; o=[f"v_mul_f32 v{T}, {ssc}, v24"]
        for gq in range(4):
            r=A+4*gq
            o+=[f"v_mul_f32 v{r+k}, v{r+k}, v{T}" for k in range(4)]
            o+=[f"v_cvt_pk_bf16_f32 v{r}, v{r}, v{r+1}",f"v_cvt_pk_bf16_f32 v{r+1}, v{r+2}, v{r+3}",
                ("st",f"buffer_store_dwordx2 {vr(r,2)}, v26, s[72:75], {sso} offen offset:{gq*512}{st_mod}")]
        return o
    def epi_ffn(sso,pk=False):
        A,B=ACC[0],ACC[1]; o=[]
        for h in range(2):
            r=A+8*h; q=B+8*h
            if pk:
                for k in range(0,8,2): o.append(f"v_pk_mul_f32 {vr(r+k,2)}, {vr(r+k,2)}, {vr(q+k,2)}")
                for k in range(0,8,2): o.append(f"v_pk_mul_f32 {vr(r+k,2)}, {vr(r+k,2)}, v[28:29] op_sel:[0,0] op_sel_hi:[1,0]")
            else:
                for k in range(8): o.append(f"v_mul_f32 v{r+k}, v{r+k}, v{q+k}")
                for k in range(8): o.append(f"v_mul_f32 v{r+k}, v{r+k}, v28")
            for k in range(4): o.append(f"v_cvt_pk_bf16_f32 v{r+k}, v{r+2*k}, v{r+2*k+1}")
            o.append(("st",f"buffer_store_dwordx4 {vr(r,4)}, v27, s[76:79], {sso} offen offset:{h*1024}{st_mod}"))
        return o
    GAP=[None]*8; csq=[]
    def emit_side(op):
        if op is None: return
        if isinstance(op,tuple):
            if op[0]=="st": g.vmem(op[1],'st')
            else: op[1]()
        else: g(op)
    def run(n0,n1,sched,per):
        side=[]
        for n in range(n0,n1):
            side+=sched.get(n,[])
            s,i,sub,ks,a,first=info(n)
            if n<80: g.lwait(xtok[ks])
            g.lwait(ftok[n]); r=freg[n]
            g(f"v_mfma_f32_32x32x16_bf16 {vr(ACC[a],16)}, {vr(r,4)}, {vr(XR+4*ks,4)}, {'0' if first else vr(ACC[a],16)}")
            if isd(n) is not None and "nocs" not in OPT:
                c=vr(CS[a],4); f0 = n in (0,5,80,120,125)
                g(f"v_mfma_f32_16x16x32_bf16 {c}, {vr(r,4)}, v[16:19], {'0' if f0 else c}")
            if n<80 and n%8==4 and "nost" not in OPT:
                for k in range(8):
                    x=XR+16*s+k
                    g(f"v_dot2c_f32_bf16 v10, s45, v{x}\nv_dot2c_f32_bf16 v11, v{x}, v{x}")
            reads(n+NWF)
            for _ in range(per):
                if side: emit_side(side.pop(0))
        assert not side, len(side)
    for n in range(NWF): reads(n)
    run(0,80,{79:cs_put(0)+cs_put(1)+st_put},3); assert not csq
    LY=g.label("K1Y"); LJ=g.label("K1J")
    g(f"s_cmp_eq_u32 s29, 1\ns_cbranch_scc1 {LY}")
    st=g.state(); sv=(dict(ftok),list(nxt),list(wbase),list(prebar),list(pend))
    run(80,120,{85:stats+corr(0,4)+corr(1,4)+GAP+epi_ffn("s38"),119:cs_put(2)},4); assert not csq
    g(f"s_branch {LJ}\n{LY}:")
    endX=g.state()
    g.restore(st); ftok.update(sv[0]); nxt[0]=sv[1][0]; wbase[:]=sv[2]; prebar[:]=sv[3]; pend[:]=sv[4]
    run(80,120,{85:stats+corr(0,4)+corr(1,4)+GAP+epi_qkv(0,"s42","s38")+epi_qkv(1,"s43","s39"),119:cs_put(2)},4); assert not csq
    g(f"{LJ}:")
    assert [k for k in endX[0] if k=='ld']==[k for k in g.vm if k=='ld'] and endX[1]==g.lg
    g.lg_done=min(g.lg_done,endX[3]); g.lwait0(); g.vm=['maybe' if k=='st' else k for k in g.vm]
    w2v=["v_lshrrev_b32 v4, 3, v0","v_and_b32 v5, 7, v0","v_lshlrev_b32 v5, 4, v5","v_mul_u32_u24 v4, 1280, v4","v_add_u32 v4, v4, v5",
        "v_lshrrev_b32 v5, 5, v0","v_bfe_u32 v6, v0, 4, 1","v_mul_u32_u24 v6, s90, v6","v_lshl_add_u32 v5, v5, 4, v6","v_bfe_u32 v6, v0, 2, 2",
        "v_add_u32 v5, v5, v6","v_lshlrev_b32 v5, 7, v5","v_and_b32 v6, 3, v0","v_lshl_add_u32 v5, v6, 3, v5",
        "v_add_u32 v5, s92, v5","v_add_u32 v6, s91, v5","v_lshlrev_b32 v7, 4, v0"]
    c0=corr(0,XR); c1=corr(1,XR+4)
    sm=" sc1" if "ssc1" in OPT else ""
    sent=[f"v_mov_b32 v{XR+8+k}, -1" for k in range(4)]+[f"""s_lshr_b32 s33, s2, 2
    s_mul_i32 s33, s33, {HO_TB}
    s_and_b32 s46, s2, 3
    s_mul_i32 s46, s46, 10240
    s_add_u32 s33, s33, s46
    s_add_u32 s33, s33, {192*512}
    s_add_u32 s46, s33, s30
    v_lshl_add_u32 v{XR+12}, v0, 4, s46
    s_lshr_b32 s46, s30, 2
    s_add_u32 s33, s33, s46
    s_add_u32 s33, s33, 8192
    v_lshl_add_u32 v{XR+13}, v0, 2, s33""",("st",f"buffer_store_dwordx4 {vr(XR+8,4)}, v{XR+12}, s[76:79], 0 offen{sm}"),
    ("st",f"buffer_store_dword v{XR+8}, v{XR+13}, s[76:79], 0 offen{sm}")]
    SN=int(os.environ.get("SN","150"))
    run(120,200,{120:w2v,126:corr(2,XR)+GAP+epi_qkv(2,"s44","s40",XR),SN:sent,198:cs_put(0)+cs_put(1)},3)
    stamp(g,6)
    g.lwait0(); g("s_barrier")
    for op in [c0[0],c1[0]]+c0[1:]+c1[1:]: emit_side(op)
    LS=g.label("K1S")
    g(f"s_cmp_ge_u32 s89, 680\ns_cbranch_scc1 {LS}")
    g("s_waitcnt vmcnt(0)")
    for nb in range(4):
        g(f"ds_read_b64_tr_b16 {vr(XR+16+4*nb,2)}, v5 offset:{nb*32}\nds_read_b64_tr_b16 {vr(XR+18+4*nb,2)}, v6 offset:{nb*32}")
    g("s_waitcnt lgkmcnt(0)")
    for nb in range(4): g(f"buffer_store_dwordx4 {vr(XR+16+4*nb,4)}, v7, s[84:87], s88 offen offset:{nb*1024}{st_mod}")
    g(f"{LS}:\ns_nop 7\ns_nop 7")
    for op in epi_ffn("s41",True): emit_side(op)
    stamp(g,7)
    if "ts" in OPT: g("s_waitcnt vmcnt(0)")
    stamp(g,8); rstamp(g,63); stamp_store(g,0)
```

```python
from gfw import *
S=96; O=80; VOFF=36864; BS=3072
ACC=176; NST=4; FR=32; CNT=2560+64; PART=20480
def k23_body(g):
    stamp_init(g,25); rstamp(g,62); stamp(g,0)
    g(f"""s_load_dwordx2 s[18:19], s[0:1], 72
    s_load_dwordx2 s[4:5], s[0:1], 0
    s_load_dwordx2 s[20:21], s[0:1], 56""")
    codepf(g,88,"parallel_sum__sliding_block__glu_gated_bilinear__prompt_kernel","B")
    g(f"""v_mov_b32 v1, v0
    v_lshrrev_b32 v2, 6, v0
    v_and_b32 v0, 63, v0
    v_readfirstlane_b32 s24, v2
    s_and_b32 s46, s2, 7
    s_lshr_b32 s47, s2, 3
    s_lshr_b32 s27, s46, 1
    s_lshl_b32 s27, s27, 2
    s_and_b32 s33, s47, 3
    s_add_u32 s27, s27, s33
    s_and_b32 s28, s46, 1
    s_lshl_b32 s28, s28, 3
    s_lshr_b32 s33, s47, 2
    s_add_u32 s28, s28, s33
    s_lshr_b32 s23, s28, 1
    s_and_b32 s22, s28, 1
    s_lshl_b32 s33, s27, 1
    s_add_u32 s22, s22, s33
    s_and_b32 s25, s24, 3
    s_and_b32 s28, s47, 1
    s_lshl_b32 s46, s46, 1
    s_add_u32 s28, s28, s46
    s_lshr_b32 s27, s47, 1
    v_lshrrev_b32 v2, 4, v0
    v_lshlrev_b32 v3, 1, v2
    v_and_b32 v4, 15, v0
    v_xor_b32 v3, v3, v4
    v_lshlrev_b32 v3, 4, v3
    v_lshl_add_u32 v8, v2, 8, v3
    v_xor_b32 v9, 0x80, v8
    s_lshl_b32 s29, s27, 2
    s_sub_u32 s29, s29, 8
    s_mul_i32 s30, s28, 2560
    s_waitcnt lgkmcnt(0)""")
    srd(g,72,"s18","s19",None,64*QKV_TB)
    g(f"s_cmp_lt_u32 s24, 4\ns_cbranch_scc1 NOSTG"); stg={}
    g(f"""v_lshrrev_b32 v2, 5, v0
    v_and_b32 v3, 31, v0
    s_lshl_b32 s31, s27, 2
    s_add_u32 s31, s31, s25
    s_mul_i32 s33, s31, {QKV_TB}
    s_add_u32 s33, s33, s30
    v_lshlrev_b32 v4, 3, v3
    v_lshl_add_u32 v5, v2, 9, v4""")
    for hh,q in ((0,16),(1,72)):
        g.vmem(f"buffer_load_dwordx2 {vr(q,2)}, v5, s[72:75], s33 offen offset:{1280*hh}")
        g.vmem(f"buffer_load_dwordx2 {vr(q+2,2)}, v5, s[72:75], s33 offen offset:{1280*hh+256}")
        g.vmem(f"buffer_load_dwordx2 {vr(q+4,2)}, v4, s[72:75], s33 offen offset:{1280*hh+1024}")
    for j in range(6):
        g(f"""s_add_u32 s33, s25, {4*j}
        s_mul_i32 s34, s33, {BS}
        s_mov_b32 m0, s34
        s_sub_u32 s34, s33, 12
        s_cmp_ge_u32 s33, 12
        s_cselect_b32 s33, s34, s33
        s_cselect_b32 s34, 2, 1
        s_mul_i32 s34, s34, 40960
        s_add_i32 s33, s33, s29
        s_max_i32 s33, s33, 0
        s_mul_i32 s33, s33, {QKV_TB}
        s_add_u32 s33, s33, s34
        s_add_u32 s33, s33, s30""")
        g.vmem(f"buffer_load_dwordx4 v8, s[72:75], s33 offen lds")
        g.vmem(f"buffer_load_dwordx4 v9, s[72:75], s33 offen offset:1024 lds")
        g("s_mov_b32 exec_hi, 0")
        stg[j]=g.vmem(f"buffer_load_dwordx4 v8, s[72:75], s33 offen offset:2048 lds")
        g("s_mov_b32 exec_hi, -1")
    g("s_barrier\nNOSTG:")
    srd(g,76,"s18","s19",HO_OFF,64*HO_TB)
    g(f"s_mul_i32 s33, s22, {2*HO_TB}\ns_add_u32 s33, s33, {HO_OFF}")
    srd(g,80,"s18","s19","s33",2*HO_TB)
    srd(g,84,"s18","s19",W2_OFF,68*40*1024)
    g(f"s_mul_i32 s33, s22, {64*1280}\ns_mul_i32 s34, s23, 160\ns_add_u32 s33, s33, s34")
    srd(g,8,"s4","s5","s33",63*1280+160); srd(g,12,"s20","s21","s33",63*1280+160)
    def coff(k): return 40960 if k==3 else CNT+k*BS
    def arrive(k,z,t): g(f"v_mov_b32 v{t}, 1\ns_mov_b64 exec, 1"); g.ds(f"ds_add_u32 v{z}, v{t} offset:{coff(k)}"); g("s_mov_b64 exec, -1")
    def spin(k,z,t,n):
        L=g.label("SP")
        g(f"""s_mov_b32 s33, 0x200000
        {L}:
        ds_read_b32 v{t}, v{z} offset:{coff(k)}
        s_sub_u32 s33, s33, 1
        s_cbranch_scc1 {L}_E
        s_waitcnt lgkmcnt(0)
        v_readfirstlane_b32 s35, v{t}
        s_cmp_lt_u32 s35, {n}
        s_cbranch_scc1 {L}
        {L}_E:"""); g.lwait0()
    LA=g.label("ATT"); LR=g.label("RED")
    def gaddr(j0):
        g(f"""v_lshlrev_b32 v4, 4, v0
        v_add_u32 v5, 4096, v4
        v_lshrrev_b32 v2, 4, v0
        v_and_b32 v3, 15, v0
        v_lshlrev_b32 v6, 4, v3
        v_lshl_add_u32 v6, v2, 9, v6
        v_add_u32 v7, {HO_TB}, v6
        s_mul_i32 s16, s25, 40960
        s_mul_i32 s33, s23, 5120
        s_add_u32 s16, s16, s33
        s_lshl_b32 s17, s25, 11
        s_mul_i32 s38, {j0}, {4*40960}
        s_add_u32 s38, s38, s16
        s_lshl_b32 s39, {j0}, 13
        s_add_u32 s39, s39, s17""")
    tk={}; to={}
    def ldw(j,st):
        b=FR+36*st
        for nb in range(5): tk[j,nb]=g.vmem(f"buffer_load_dwordx4 {vr(b+4*nb,4)}, v{4+nb//4}, s[84:87], s38 offen offset:{(nb%4)*1024}")
        g(f"s_add_u32 s38, s38, {4*40960}")
    def oreg(j,tg): return (12,16,20,28)[tg] if j==16 else FR+36*(j%NST)+20+4*tg
    def ldh(j,st,mod=""):
        for tg in range(4): to[j,tg]=g.vmem(f"buffer_load_dwordx4 {vr(oreg(j,tg),4)}, v{6+tg//2}, s[80:83], s39 offen offset:{(tg%2)*256}{mod}")
        g(f"s_add_u32 s39, s39, 8192")
    def chk(j): g(f"v_max3_u32 v2, v{oreg(j,0)}, v{oreg(j,1)}, v{oreg(j,2)}\nv_max_u32 v2, v2, v{oreg(j,3)}\nv_cmp_eq_u32 vcc, -1, v2\ns_nop 3")
    def retry(q):
        g(f"RT_{q}:\ns_mov_b32 s33, 0x20000\nRTL_{q}:\ns_waitcnt vmcnt(0)\ns_mov_b32 s34, 0")
        for r in range(q,17):
            chk(r); g(f"s_cbranch_vccz RTS_{q}_{r}\ns_mov_b32 s34, 1\ns_add_u32 s35, s37, {(r-12)*8192}")
            for tg in range(4): g(f"buffer_load_dwordx4 {vr(oreg(r,tg),4)}, v{6+tg//2}, s[80:83], s35 offen offset:{(tg%2)*256} sc1")
            g(f"RTS_{q}_{r}:")
        if "ts" in OPT: g(f"s_add_u32 s93, s93, s34")
        g(f"s_sub_u32 s33, s33, 1\ns_cselect_b32 s34, 0, s34\ns_cmp_lg_u32 s34, 0\ns_cbranch_scc1 RTL_{q}\ns_waitcnt vmcnt(0)\ns_branch RTB_{q}")
    def mm(j,st,first,tgo):
        b=FR+36*st
        for x in range(20):
            nb,tg=(x%5,x//5) if tgo else (x//4,x%4)
            g.vwait(max(tk[j,nb],to[j,tg])); a=ACC+4*(nb*4+tg)
            g(f"v_mfma_f32_16x16x32_bf16 {vr(a,4)}, {vr(b+4*nb,4)}, {vr(oreg(j,tg),4)}, {'0' if first else vr(a,4)}")
    def xres():
        for k in range(2):
            g(f"""v_add_u32 v12, {512*k}, v1
            v_lshrrev_b32 v13, 7, v12
            v_bfe_u32 v14, v12, 5, 2
            v_and_b32 v15, 15, v12
            v_lshl_add_u32 v14, v14, 4, v15
            v_mul_u32_u24 v14, 1280, v14
            v_lshl_add_u32 v14, v13, 5, v14
            v_and_b32 v13, 16, v12
            v_add_u32 v{8+k}, v13, v14""")
            g.vmem(f"buffer_load_dwordx4 {vr(16+4*k,4)}, v{8+k}, s[8:11], 0 offen")
        g(f"""v_lshrrev_b32 v12, 4, v1
        v_lshlrev_b32 v12, 9, v12
        v_lshl_add_u32 v10, v15, 4, v12
        s_mul_i32 s33, s25, {PART}
        v_lshl_add_u32 v11, v0, 4, s33""")
    g(f"s_cmp_ge_u32 s24, 4\ns_cbranch_scc1 {LA}")
    st0=g.state()
    g("""s_and_b32 s33, s22, 7
    s_mul_i32 s33, s33, 3
    s_lshr_b32 s33, s33, 1
    s_and_b32 s34, s23, 3
    s_mul_i32 s34, s34, 3
    s_add_u32 s33, s33, s34
    s_sub_u32 s34, s33, 12
    s_cmp_ge_u32 s33, 12
    s_cselect_b32 s35, s34, s33""")
    if "norot3" in OPT: g("s_mov_b32 s35, 0")
    if "rot2" in OPT: g("s_add_u32 s35, s22, s23\ns_and_b32 s35, s35, 1\ns_mul_i32 s35, s35, 6")
    if "rot4" in OPT: g("s_add_u32 s35, s22, s23\ns_and_b32 s35, s35, 3\ns_mul_i32 s35, s35, 3")
    gaddr("s35")
    g(f"s_add_u32 s36, s16, {48*40960}\ns_add_u32 s37, s17, {12*8192}")
    def loads(j):
        if j<12:
            ldh(j,j%NST); ldw(j,j%NST)
            if j<11: g("s_cmp_eq_u32 s38, s36\ns_cselect_b32 s38, s16, s38\ns_cselect_b32 s39, s17, s39")
            else: g("s_mov_b32 s38, s36\ns_mov_b32 s39, s37")
        elif j<16: ldw(j,j%NST)
    g(f"""v_lshrrev_b32 v12, 4, v1
    v_mul_u32_u24 v12, {BS}, v12
    v_and_b32 v13, 15, v1
    v_lshl_add_u32 v12, v13, 4, v12
    v_mov_b32 v16, 0x3f803f80
    v_mov_b32 v17, v16
    v_mov_b32 v18, v16
    v_mov_b32 v19, v16
    v_subrev_u32 v13, 192, v1
    v_mul_u32_u24 v14, {BS}, v13
    v_add_u32 v20, s29, v13
    v_mov_b32 v21, 0x3f80
    v_cmp_gt_i32 vcc, 0, v20
    s_cmp_eq_u32 s24, 3
    s_cbranch_scc1 W3_INIT
    ds_write_b128 v12, v[16:19] offset:{VOFF+2560}
    s_branch W3_DONE
    W3_INIT:
    v_cndmask_b32 v20, 0, v21, vcc
    v_mov_b32 v21, 0
    s_mov_b64 exec, 0xfff
    ds_write_b64 v14, v[20:21] offset:2560
    ds_write_b32 v14, v21 offset:{CNT}
    v_mov_b32 v14, 40960
    ds_write_b32 v14, v21 offset:40960
    s_mov_b64 exec, -1
    W3_DONE:""")
    g.lwait0()
    NPRE=int(os.environ.get("NPRE","4"))
    for j in range(NPRE): loads(j)
    g("s_barrier"); stamp(g,1)
    for j in range(NPRE,NST): loads(j)
    SPJ=int(os.environ.get("SPJ","10"))
    if "ts" in OPT: g("s_mov_b32 s93, 0")
    for j in range(17):
        if j>=12:
            g.vwait(to[j,3]); chk(j); g(f"s_cbranch_vccnz RT_{j}\nRTB_{j}:")
            if j==12: stamp(g,6); rstamp(g,53)
        mm(j,j%NST,j==0,j>=12); loads(j+NST)
        if j in (0,5): stamp(g,2+j//5)
        if j==SPJ:
            stamp(g,5); rstamp(g,54)
            for q in range(12,j+5): ldh(q,q%NST," sc1")
        elif SPJ<j<12: ldh(j+4,j%NST," sc1")
        if j==11: ldh(16,0," sc1")
        if j==12: ldw(16,0)
    xres(); g("v_mov_b32 v2, 40960"); spin(3,2,3,4)
    stamp(g,7)
    if "ts" in OPT: g("v_writelane_b32 v25, s93, 52")
    for f in range(20): g.ds(f"ds_write_b128 v11, {vr(ACC+4*f,4)} offset:{f*1024}")
    g.vwait0(); g(f"s_branch {LR}")
    for q in range(12,17): retry(q)
    g(f"{LA}:")
    g.restore(st0)
    if "prio" in OPT: g("s_setprio 1")
    g("v_lshlrev_b32 v6, 2, v2\nv_sub_u32 v6, v3, v6\nv_mov_b32 v7, 0xffff\nv_mov_b32 v13, 0xffff0000")
    for r in range(16): g(f"v_cmp_le_i32 s[{40+2*r}:{41+2*r}], {8*(r//4)+r%4}, v6")
    for k in range(8):
        g(f"v_cndmask_b32 v14, 0, v7, s[{40+4*k}:{41+4*k}]\nv_cndmask_b32 v15, 0, v13, s[{42+4*k}:{43+4*k}]\nv_or_b32 v{64+k}, v14, v15")
    g(f"s_mul_i32 s34, s25, {BS}\nv_cmp_lt_u32 vcc, 31, v0")
    KF=[32,40,48]
    def setup(hh):
        g(f"""v_lshrrev_b32 v6, 1, v3
        v_and_b32 v7, 1, v3
        v_lshlrev_b32 v7, 3, v7
        v_add_u32 v7, s34, v7""")
        for (d,expr) in ((10,f"v_lshl_add_u32 v13, v2, 1, {5*hh}"),(11,"v_add_u32 v13, 1, v13"),(12,f"v_mov_b32 v13, {5*hh+4}")):
            g(expr)
            g(f"""v_and_b32 v14, 7, v13
            v_lshlrev_b32 v14, 1, v14
            v_xor_b32 v14, v14, v6
            v_lshl_add_u32 v14, v14, 4, v7
            v_lshl_add_u32 v{d}, v13, 8, v14""")
        g(f"""s_add_u32 s35, s34, 2560
        v_mov_b32 v13, s35
        v_cndmask_b32 v12, v12, v13, vcc""")
        for k in KF: g(f"v_mov_b32 v{k+6}, 0\nv_mov_b32 v{k+7}, 0")
    def setup2(hh):
        return f"""v_bfe_u32 v6, v0, 4, 1
        v_and_b32 v7, 3, v0
        v_lshl_add_u32 v6, v6, 2, v7
        v_add_u32 v7, {5*hh}, v6
        v_and_b32 v4, 7, v7
        v_lshlrev_b32 v4, 1, v4
        v_bfe_u32 v5, v0, 3, 1
        v_lshl_add_u32 v5, v2, 1, v5
        v_xor_b32 v4, v4, v5
        v_lshlrev_b32 v4, 4, v4
        v_bfe_u32 v5, v0, 2, 1
        v_lshl_add_u32 v4, v5, 3, v4
        v_cmp_lt_u32 s[36:37], 4, v6
        v_lshlrev_b32 v7, 8, v7
        v_mov_b32 v5, 2560
        s_add_u32 s35, s34, {VOFF}
        v_cndmask_b32 v7, v7, v5, s[36:37]
        v_add3_u32 v28, v7, v4, s35
        v_xor_b32 v29, 64, v28
        v_xor_b32 v30, 128, v28
        v_xor_b32 v31, 192, v28
        s_mul_i32 s33, s28, 2560
        v_lshlrev_b32 v6, 4, v3
        v_lshl_add_u32 v6, v2, 9, v6
        s_mul_i32 s35, s31, {HO_TB}
        s_add_u32 s33, s33, s35
        s_add_u32 s33, s33, {192*512}
        v_add_u32 v15, s33, v6""".split("\n")
    setup(0)
    g("v_mov_b32 v22, 0\nv_mov_b32 v23, 0\nv_mov_b32 v78, 0\nv_mov_b32 v79, 0\nv_mov_b32 v6, 0xf149\nv_mov_b32 v56, 0x3f803f80\nv_mov_b32 v57, 0\nv_mov_b32 v27, 0\nv_cndmask_b32 v56, v56, v57, vcc")
    g.vwait(stg[2])
    g("v_cndmask_b32 v20, v20, v6, vcc\nv_cndmask_b32 v21, v21, v22, vcc\nv_cndmask_b32 v76, v76, v6, vcc\nv_cndmask_b32 v77, v77, v22, vcc")
    arrive(1,22,6); spin(1,22,6,4); stamp(g,1)
    order=[0,8,1,2,3,4,5,6,7]
    def item(hh,Q):
        kt={}
        def kread(i):
            if i>=9: return
            t=order[i]; k=KF[i%3]
            g.ds(f"ds_read_b64 {vr(k,2)}, v10 offset:{t*BS}"); g.ds(f"ds_read_b64 {vr(k+2,2)}, v11 offset:{t*BS}")
            kt[i]=g.ds(f"ds_read_b64 {vr(k+4,2)}, v12 offset:{t*BS}")
        def mx(t,first):
            b=S+16*t; o=[]
            for k in range(0,16,2):
                a=f"v{13+(k//2)%2}"
                if first and k<4: o.append(f"v_max_f32 {a}, v{b+k}, v{b+k+1}")
                else: o.append(f"v_max3_f32 {a}, v{b+k}, v{b+k+1}, {a}")
            return o
        for i in range(3): kread(i)
        s2=setup2(hh)
        for i in range(9):
            t=order[i]; k=KF[i%3]; g.lwait(kt[i])
            g(f"v_mfma_f32_32x32x16_bf16 {vr(S+16*t,16)}, {vr(k,4)}, {vr(Q,4)}, 0")
            g(f"v_mfma_f32_32x32x16_bf16 {vr(S+16*t,16)}, {vr(k+4,4)}, {vr(Q+4,4)}, {vr(S+16*t,16)}")
            kread(i+3)
            if i<3: g("\n".join(s2[11*i:11*i+11]))
            elif i==3:
                for r in range(16): g(f"v_cndmask_b32 v{S+128+r}, v{S+r}, v{S+128+r}, s[{40+2*r}:{41+2*r}]")
                g("\n".join(mx(8,True)))
            else: g("\n".join(mx(order[i-2],False)))
            if hh==0 and i==5: g.vwait0(); arrive(2,22,6)
        VF=[32,36,40,44,48,52]; vt={}
        seq=[(t,m) for t in [1,2,3,4,5,6,7,8,0] for m in range(2)]
        def vread(i):
            if i>=18: return
            t,m=seq[i]; r=VF[i%6]
            g.ds(f"ds_read_b64_tr_b16 {vr(r,2)}, v{28+2*m} offset:{t*BS}")
            vt[i]=g.ds(f"ds_read_b64_tr_b16 {vr(r+2,2)}, v{29+2*m} offset:{t*BS}")
        g("\n".join(mx(6,False)))
        if "ts2" in OPT: stamp(g,10+3*hh)
        if hh==0: spin(2,22,6,4)
        for i in range(6): vread(i)
        g("s_nop 4"); g("\n".join(mx(7,False)))
        g("""v_max_f32 v13, v13, v14
        v_mov_b32 v14, v13
        s_nop 1
        v_permlane32_swap_b32 v13, v14
        v_max_f32 v12, v13, v14
        v_cvt_pk_bf16_f32 v13, -v12, -v12
        v_and_b32 v13, 0xffff0000, v13
        v_sub_f32 v13, -v12, v13
        v_cvt_pk_bf16_f32 v26, -v12, v13
        s_nop 1""")
        def sub(t): g(f"v_mfma_f32_32x32x8bf16_1k {vr(S+16*t,16)}, v[56:57], v[26:27], {vr(S+16*t,16)}")
        sub(1); sub(2); g("s_nop 7\ns_nop 3")
        if "ts2" in OPT: stamp(g,11+3*hh)
        def pv(i):
            t,m=seq[i]; g.lwait(vt[i])
            g(f"v_mfma_f32_32x32x16_bf16 {vr(O,16)}, {vr(VF[i%6],4)}, {vr(S+16*t+8*m,4)}, {'0' if i==0 else vr(O,16)}")
            vread(i+6)
        for i in range(16):
            t,m=seq[i]; b=S+16*t+8*m
            for k in range(8):
                g(f"v_exp_f32 v{b+k}, v{b+k}")
                if k==1 and i>0: pv(i-1)
                if k==5 and m==0 and t+2<=8: sub(t+2)
            for k in range(4): g(f"v_cvt_pk_bf16_f32 v{b+k}, v{b+2*k}, v{b+2*k+1}")
            if t==8:
                for k in range(4):
                    b=S+128+8*m+k
                    g(f"v_and_b32 v{b+4}, v{64+4*m+k}, v{b}\nv_xor_b32 v{S+8*m+k}, v{b+4}, v{b}\nv_mov_b32 v{b}, v{b+4}")
        g("s_nop 1")
        if "ts2" in OPT: stamp(g,12+3*hh)
        for i in (15,16,17): pv(i)
        if hh==0: setup(1)
        else: g("s_nop 7\ns_nop 3")
        g(f"v_rcp_f32 v14, v{O+12}\ns_nop 0")
        for gq in range(3):
            r=O+4*gq; d=((58,60,240),(242,244,62))[hh][gq]
            for k in range(4): g(f"v_mul_f32 v{r+k}, v{r+k}, v14")
            g(f"v_cvt_pk_bf16_f32 v{d}, v{r}, v{r+1}\nv_cvt_pk_bf16_f32 v{d+1}, v{r+2}, v{r+3}")
        def sw(a,b): g(f"v_permlane32_swap_b32 v{a}, v{b}\nv_permlane32_swap_b32 v{a+1}, v{b+1}")
        if hh==0:
            sw(58,60); g.vmem("buffer_store_dwordx4 v[58:61], v15, s[76:79], 0 offen sc1",'st')
        else:
            sw(242,244); sw(246,62); sw(240,244)
            g.vmem("buffer_store_dwordx4 v[240:243], v15, s[76:79], 0 offen offset:1024 sc1",'st')
            g("s_mov_b32 exec_lo, 0")
            g.vmem("buffer_store_dwordx4 v[244:247], v15, s[76:79], 0 offen offset:1536 sc1",'st')
            g("s_mov_b32 exec_lo, -1")
        stamp(g,2+hh)
    item(0,16); item(1,72)
    rstamp(g,50); g("v_mov_b32 v7, 40960\ns_setprio 0"); arrive(3,7,6)
    if "ts" in OPT: g.vwait0(); rstamp(g,51)
    stamp(g,5); xres(); g.vwait0()
    g(f"{LR}:")
    g.lwait0(); g("s_barrier"); stamp(g,8)
    g("v_add_u32 v11, 40960, v10")
    def red(k):
        for w in range(4):
            for h in range(2): g(f"ds_read_b128 {vr(32+8*w+4*h,4)}, v{10+w//2} offset:{(w%2)*PART+256*h+16384*k}")
        for w in range(1,4):
            g(f"s_waitcnt lgkmcnt({6-2*w})")
            for q in range(0,8,2): g(f"v_pk_add_f32 {vr(32+q,2)}, {vr(32+q,2)}, {vr(32+8*w+q,2)}")
        for q in range(4):
            x=16+4*k+q
            g(f"v_lshlrev_b32 v28, 16, v{x}\nv_and_b32 v29, 0xffff0000, v{x}\nv_pk_add_f32 {vr(32+2*q,2)}, {vr(32+2*q,2)}, v[28:29]")
            g(f"v_cvt_pk_bf16_f32 v{x}, v{32+2*q}, v{32+2*q+1}")
        g(f"buffer_store_dwordx4 {vr(16+4*k,4)}, v{8+k}, s[12:15], 0 offen")
    red(0)
    g("s_cmp_ge_u32 s24, 2\ns_cbranch_scc1 RED_DONE"); red(1); g("RED_DONE:")
    stamp(g,9); rstamp(g,63); stamp_store(g,1)
```

```python
import sys
from gfw import *
import k1,k23
N="parallel_sum__sliding_block__glu_gated_bilinear__prompt"
hdr=open(f"cdna_kernels/{N}.s.ref").read().split("; @launch")[0]
ks=[("k1_kernel",k1.k1_body,512,159744),(N+"_kernel",k23.k23_body,512,82048)]
o=[hdr.rstrip("\n")]
for n,f,b,l in ks: o.append(f"; @launch kernel={n} grid=(256,1,1) block=({b},1,1) lds={l}")
o.append('.amdgcn_target "amdgcn-amd-amdhsa--gfx950"\n.text')
for i,(n,f,b,l) in enumerate(ks):
    g=G(); g.lab=1000*i
    g(f"s_cmp_ge_u32 s2, 256\ns_cbranch_scc1 END_{i}"); f(g); g(f"END_{i}:\ns_endpgm")
    o.append(khead(n)); o.append(g.text())
o.append('CODE_END:\n.section .rodata,"a"')
for n,f,b,l in ks: o.append(kdesc(n))
open(sys.argv[1],"w").write("\n".join(o)+"\n")
```

```python
class G:
    def __init__(s):
        s.L=[]; s.vm=[]; s.lg=0; s.vm_done=-1; s.lg_done=-1; s.lab=0
    def __call__(s,t):
        for l in t.split("\n"):
            l=l.strip()
            if l: s.L.append("    "+l if not l.endswith(":") else l)
    def label(s,p="L"):
        s.lab+=1; return f"{p}_{s.lab}"
    def vmem(s,t,kind='ld'):
        s(t); s.vm.append(kind); return len(s.vm)-1
    def vwait(s,tok):
        if tok<=s.vm_done: return
        n=sum(1 for k in s.vm[tok+1:] if k in ('ld','st'))
        assert s.vm[tok]=='ld'
        n=min(n,63)
        s(f"s_waitcnt vmcnt({n})"); s.vm_done=tok
    def vwait0(s):
        s("s_waitcnt vmcnt(0)"); s.vm_done=len(s.vm)-1
    def ds(s,t):
        s(t); s.lg+=1; return s.lg-1
    def lwait(s,tok):
        if tok<=s.lg_done: return
        n=min(s.lg-1-tok,15)
        s(f"s_waitcnt lgkmcnt({n})"); s.lg_done=s.lg-1-n
    def lwait0(s):
        s("s_waitcnt lgkmcnt(0)"); s.lg_done=s.lg-1
    def state(s): return (list(s.vm),s.lg,s.vm_done,s.lg_done)
    def restore(s,st): s.vm=list(st[0]); s.lg,s.vm_done,s.lg_done=st[1:]
    def text(s): return "\n".join(s.L)
def vr(a,n=1): return f"v{a}" if n==1 else f"v[{a}:{a+n-1}]"
def sr(a,n=1): return f"s{a}" if n==1 else f"s[{a}:{a+n-1}]"
def srd(g,d,lo,hi,off,size):
    if off is None: g(f"s_mov_b32 s{d}, {lo}\ns_mov_b32 s{d+1}, {hi}")
    else: g(f"s_add_u32 s{d}, {lo}, {off}\ns_addc_u32 s{d+1}, {hi}, 0")
    g(f"s_mov_b32 s{d+2}, {size}\ns_mov_b32 s{d+3}, 0x20000")
def khead(name): return f".globl {name}\n.p2align 8\n.type {name},@function\n{name}:"
def kdesc(name,nv=256,acc=None):
    return f""".p2align 6
.amdhsa_kernel {name}
  .amdhsa_next_free_vgpr {nv}
  .amdhsa_next_free_sgpr 102
  .amdhsa_accum_offset {acc or min(nv,256)}
  .amdhsa_group_segment_fixed_size 0
  .amdhsa_kernarg_size 80
  .amdhsa_user_sgpr_count 2
  .amdhsa_user_sgpr_kernarg_segment_ptr 1
  .amdhsa_system_sgpr_workgroup_id_x 1
.end_amdhsa_kernel"""
QKV_OFF=0; QKV_TB=122880
HO_OFF=0x800000; HO_TB=139264
W2_OFF=0x1200000; FL_OFF=0x1600000
QSCALE=(20**-0.5)*1.4426950408889634
import struct
def f32(x): return "0x%08x"%struct.unpack("<I",struct.pack("<f",x))[0]

import os
OPT=set(os.environ.get("OPT","").split(","))
TS_OFF=0x2000000
def stamp(g,i):
    if "ts" in OPT: g(f"s_memtime s[{94+0}:{95}]\ns_waitcnt lgkmcnt(0)\nv_writelane_b32 v{g.tsreg}, s94, {i}"); g.lg_done=g.lg-1
def stamp_init(g,reg):
    g.tsreg=reg
    if "ts" in OPT: g(f"v_mov_b32 v{reg}, 0")
def stamp_store(g,kid):
    if "ts" not in OPT: return
    g(f"""s_add_u32 s96, s18, {TS_OFF+kid*0x100000}
    s_addc_u32 s97, s19, 0
    s_mov_b32 s98, 0x100000
    s_mov_b32 s99, 0x20000
    s_lshl_b32 s94, s2, 3
    s_add_u32 s94, s94, s24
    s_lshl_b32 s94, s94, 8
    v_mbcnt_lo_u32_b32 v1, -1, 0
    v_mbcnt_hi_u32_b32 v1, -1, v1
    v_lshlrev_b32 v1, 2, v1
    s_nop 4
    buffer_store_dword v{g.tsreg}, v1, s[96:99], s94 offen""")

def rstamp(g,i):
    if "ts" in OPT: g(f"s_memrealtime s[94:95]\ns_waitcnt lgkmcnt(0)\nv_writelane_b32 v{g.tsreg}, s94, {i}"); g.lg_done=g.lg-1
STM=""
for o in OPT:
    if o.startswith("st="): STM=" "+o[3:].replace("+"," ")

FSH=int(os.environ.get("FSH","7"))

def codepf(g,d,start,tag):
    if "nocpf" in OPT: return
    g(f"""s_getpc_b64 s[{d}:{d+1}]
    PC_{tag}:
    v_lshlrev_b32 v254, 7, v0
    s_sub_u32 s{d}, s{d}, PC_{tag}-{start}
    s_subb_u32 s{d+1}, s{d+1}, 0
    s_mov_b32 s{d+2}, CODE_END-{start}
    s_mov_b32 s{d+3}, 0x20000""")
    g.vmem(f"buffer_load_dword v255, v254, s[{d}:{d+3}], 0 offen")
```

```python
from gfw import *
XR=96; ACC=[48,64,80]; WF=32; NWF=4
NB=9; EX=147456
def k1_body(g, st_mod=""):
    stamp_init(g,29); rstamp(g,62); stamp(g,0); st_mod=STM
    g("""s_load_dwordx4 s[4:7], s[0:1], 0
    s_load_dwordx2 s[8:9], s[0:1], 16
    s_load_dwordx4 s[12:15], s[0:1], 32
    s_load_dwordx2 s[16:17], s[0:1], 48
    s_load_dwordx2 s[18:19], s[0:1], 72""")
    codepf(g,84,"k1_kernel","A")
    g("""v_lshrrev_b32 v1, 6, v0
    v_and_b32 v0, 63, v0
    s_nop 0
    v_readfirstlane_b32 s24, v1
    s_and_b32 s46, s2, 7
    s_lshr_b32 s47, s2, 3
    s_and_b32 s27, s46, 1
    s_lshl_b32 s27, s27, 3
    s_and_b32 s33, s47, 7
    s_add_u32 s27, s27, s33
    s_lshr_b32 s28, s46, 1
    s_lshl_b32 s28, s28, 2
    s_lshr_b32 s33, s47, 3
    s_add_u32 s28, s28, s33
    s_and_b32 s25, s24, 3
    s_lshr_b32 s26, s24, 2
    s_lshl_b32 s30, s24, 10
    s_mov_b32 s45, 0x3f803f80""")
    g("""s_sub_u32 s46, s28, 8
    s_mul_i32 s47, s46, 3
    s_lshl_b32 s33, s28, 1
    s_cmp_ge_u32 s28, 8
    s_cselect_b32 s29, 1, 0
    s_cselect_b32 s34, s47, s33
    s_add_u32 s35, s34, s29
    s_cmp_ge_u32 s28, 6
    s_cselect_b32 s36, 22, 24
    s_add_u32 s36, s36, s28
    s_add_u32 s47, s47, 2
    s_add_u32 s33, s33, 1
    s_add_u32 s46, s46, 16
    s_cmp_ge_u32 s28, 8
    s_cselect_b32 s36, s47, s36
    s_cselect_b32 s37, s46, s33
    s_mov_b32 s46, 3072
    s_mov_b32 s47, 3840
    s_cselect_b32 s32, s47, s46""")
    g("""v_lshrrev_b32 v2, 3, v0
    s_lshl_b32 s33, s24, 3
    v_add_u32 v2, s33, v2
    v_and_b32 v3, 7, v0
    v_bfe_u32 v4, v2, 1, 3
    v_xor_b32 v4, v4, v3
    v_lshlrev_b32 v4, 4, v4
    s_movk_i32 s33, 1280
    v_mad_u32_u24 v8, v2, s33, v4
    v_bfe_u32 v4, v2, 1, 1
    v_lshlrev_b32 v4, 2, v4
    v_xor_b32 v4, v4, v3
    v_lshlrev_b32 v4, 4, v4
    v_mad_u32_u24 v9, v2, s32, v4
    s_mul_i32 s33, s27, 163840
    s_mul_i32 s38, s32, 639
    s_add_u32 s38, s38, 128
    s_lshl_b32 s32, s32, 6
    s_lshl_b32 s46, s34, 7
    s_lshl_b32 s47, s35, 7
    s_waitcnt lgkmcnt(0)""")
    srd(g,48,"s4","s5","s33",163840)
    g("""s_cmp_eq_u32 s29, 1
    s_cselect_b32 s52, s6, s12
    s_cselect_b32 s53, s7, s13
    s_cselect_b32 s56, s6, s14
    s_cselect_b32 s57, s7, s15""")
    srd(g,52,"s52","s53","s46","s38")
    srd(g,56,"s56","s57","s47","s38")
    g("""s_and_b32 s20, s28, 3
    s_mul_i32 s20, s20, 5
    s_lshr_b32 s20, s20, 1
    s_and_b32 s21, s27, 7
    s_add_u32 s20, s20, s21
    s_sub_u32 s21, s20, 10
    s_cmp_ge_u32 s20, 10
    s_cselect_b32 s20, s21, s20""")
    if "norot" in OPT: g("s_mov_b32 s20, 0")
    if "rotc" in OPT: g("s_add_u32 s20, s27, s28\ns_and_b32 s20, s20, 1\ns_mul_i32 s20, s20, 5")
    if "rotd" in OPT: g("s_add_u32 s20, s27, s28\ns_and_b32 s20, s20, 3\ns_mul_i32 s20, s20, 5\ns_lshr_b32 s20, s20, 1")
    if "rote" in OPT: g("s_add_u32 s20, s27, s28\ns_and_b32 s20, s20, 1")
    if "rotf" in OPT: g("s_add_u32 s20, s27, s28\ns_and_b32 s20, s20, 3")
    g("""s_mul_i32 s31, s20, s32
    s_mul_i32 s23, s32, 10
    s_mul_i32 s21, s20, %d
    s_mul_i32 s22, s20, %d
    s_lshl_b32 s20, s20, 7"""%(64*3840,64*3072))
    def adv(r,step,lim): g(f"s_add_u32 {r}, {r}, {step}\ns_cmp_eq_u32 {r}, {lim}\ns_cselect_b32 {r}, 0, {r}")
    items=[]
    for s in range(10): items+= [("x",s),("w0",s)]
    for s in range(5): items.append(("w1",s))
    for s in range(10): items.append(("w2",s))
    tok={}
    def issue(it):
        if it>=len(items): return
        kind,j=items[it]; base=(it%NB)*16384
        for t in range(2):
            g(f"s_add_u32 m0, s30, {base+t*8192}")
            if kind=="x":
                g(f"s_add_u32 s33, s20, {t*64*1280}"); a=("v8",48,"s33")
            elif kind=="w0":
                g("s_nop 0"); a=("v9",52+4*t,"s31")
            elif kind=="w1":
                g("s_nop 0"); a=("v8",60,"s21")
            else:
                g("s_nop 0"); a=("v9",64+4*t,"s22")
            tok[it]=g.vmem(f"buffer_load_dwordx4 {a[0]}, s[{a[1]}:{a[1]+3}], {a[2]} offen lds")
            if kind=="w1": adv("s21",64*3840,640*3840)
        if kind=="x": adv("s20",128,1280)
        if kind=="w0": adv("s31","s32","s23")
        if kind=="w2": adv("s22",64*3072,640*3072)
        if it==19:
            g("""v_lshrrev_b32 v8, 3, v0
            s_lshl_b32 s33, s24, 3
            v_add_u32 v8, s33, v8
            v_bfe_u32 v30, v8, 1, 1
            v_lshlrev_b32 v30, 2, v30
            v_and_b32 v9, 7, v0
            v_xor_b32 v30, v30, v9
            v_lshlrev_b32 v30, 4, v30
            v_mul_u32_u24 v9, 3072, v8
            v_mul_u32_u24 v8, 3840, v8
            v_add_u32 v9, v9, v30
            v_add_u32 v8, v8, v30""")
    NI=int(os.environ.get("NI","4")); GP=int(os.environ.get("GP","-1"))
    def gpf():
        g(f"s_mov_b64 s[88:89], s[4:5]\ns_mov_b32 s90, {2048*1280}\ns_mov_b32 s91, 0x20000\ns_movk_i32 s92, 40")
        for w,p,sz,n in ((2,6,640*3840,38),(4,12,640*3072,60),(5,14,640*3072,60),(6,16,1536*1280,60),(7,8,640*1280,25)):
            g(f"s_cmp_ge_u32 s24, {w}\ns_cselect_b64 s[88:89], s[{p}:{p+1}], s[88:89]\ns_cselect_b32 s90, {sz}, s90\ns_cselect_b32 s92, {n}, s92")
        g("""s_lshl_b32 s46, s2, 1
        s_and_b32 s47, s24, 1
        s_add_u32 s46, s46, s47
        s_cmp_ge_u32 s24, 4
        s_cselect_b32 s46, s2, s46
        s_mul_i32 s46, s46, s92
        v_add_lshl_u32 v253, v0, s46, 7
        v_cmp_gt_u32 vcc, s92, v0
        s_mov_b64 exec, vcc""")
        g.vmem("buffer_load_dword v252, v253, s[88:91], 0 offen"); g("s_mov_b64 exec, -1")
    for it in range(NI):
        if it==GP: gpf()
        issue(it)
        if it%2==1 and it<NI-1 and "ib" in OPT: g("s_barrier")
    if GP==NI: gpf()
    g("s_cmp_eq_u32 s26, 0\ns_cselect_b64 vcc, 0, -1")
    g("s_lshl_b32 s46, s36, 7"); srd(g,60,"s6","s7","s46",639*3840+128)
    g("s_lshl_b32 s46, s37, 7"); srd(g,64,"s12","s13","s46",639*3072+128); srd(g,68,"s14","s15","s46",639*3072+128)
    if "pf" in OPT:
        g("s_mov_b64 s[88:89], s[48:49]\ns_mov_b64 s[90:91], s[50:51]\ns_movk_i32 s92, 128\ns_lshr_b32 s93, s32, 6")
        for w,(sd,p) in enumerate(((52,"s93"),(56,"s93"),(60,"3840"),(64,"3072"),(68,"3072"))):
            g(f"s_cmp_eq_u32 s24, {w}\ns_cselect_b64 s[88:89], s[{sd}:{sd+1}], s[88:89]\ns_cselect_b64 s[90:91], s[{sd+2}:{sd+3}], s[90:91]\ns_cselect_b32 s92, {p}, s92")
        g("""s_and_b32 s46, s27, 7
        s_mul_i32 s46, s46, 80
        s_and_b32 s47, s28, 3
        s_mul_i32 s47, s47, 320
        s_mul_i32 s33, s24, 107
        s_add_u32 s47, s47, s33
        s_sub_u32 s47, s47, 535
        s_cmp_lt_u32 s24, 5
        s_cselect_b32 s46, s46, s47
        s_movk_i32 s47, 106
        s_cselect_b32 s47, 79, s47
        v_add_u32 v12, 64, v0
        v_min_u32 v12, s47, v12
        v_add_u32 v13, s46, v0
        v_add_u32 v12, s46, v12
        v_mul_u32_u24 v13, s92, v13
        v_mul_u32_u24 v12, s92, v12""")
        g.vmem("buffer_load_dword v20, v13, s[88:91], 0 offen"); g.vmem("buffer_load_dword v21, v12, s[88:91], 0 offen")
    g("s_lshr_b32 s46, s28, 1\ns_cmp_eq_u32 s46, 3\ns_cselect_b64 s[96:97], 0, -1")
    srd(g,72,"s18","s19",None,64*QKV_TB)
    srd(g,76,"s18","s19",HO_OFF,64*HO_TB)
    g(f"""s_lshl_b32 s38, s34, 12
    s_lshl_b32 s39, s35, 12
    s_lshl_b32 s40, s36, 12
    s_lshl_b32 s41, s37, 12
    s_mov_b32 s46, {f32(QSCALE)}
    s_cmp_lt_u32 s34, 10
    s_cselect_b32 s42, s46, 1.0
    s_cmp_lt_u32 s35, 10
    s_cselect_b32 s43, s46, 1.0
    s_cmp_lt_u32 s36, 10
    s_cselect_b32 s44, s46, 1.0""")
    g("""v_lshrrev_b32 v12, 5, v0
    v_bfe_u32 v13, v0, 2, 2
    v_lshl_add_u32 v1, v12, 3, v13
    v_lshlrev_b32 v1, 7, v1
    v_lshrrev_b32 v13, 1, v13
    v_xor_b32 v13, s26, v13
    v_lshl_add_u32 v1, v13, 6, v1
    v_bfe_u32 v13, v0, 4, 1
    v_lshl_add_u32 v1, v13, 5, v1
    v_and_b32 v13, 3, v0
    v_lshl_add_u32 v1, v13, 3, v1
    s_lshl_b32 s46, s26, 1
    s_xor_b32 s93, s46, s25
    s_lshl_b32 s46, s93, 11
    v_add_u32 v1, s46, v1
    v_xor_b32 v2, 0x800, v1
    v_xor_b32 v3, 0x1000, v1
    v_xor_b32 v25, 0x1800, v1""")
    g("""v_and_b32 v31, 31, v0
    v_bfe_u32 v13, v0, 1, 3
    v_xor_b32 v13, v13, v12
    v_lshlrev_b32 v13, 4, v13
    s_lshl_b32 s46, s25, 12
    v_lshl_add_u32 v4, v31, 7, v13
    v_add_u32 v4, s46, v4
    s_lshl_b32 s46, s93, 5
    v_xor_b32 v4, s46, v4
    v_xor_b32 v5, 32, v4
    v_xor_b32 v6, 64, v4
    v_xor_b32 v7, 96, v4""")
    g(f"""s_lshl_b32 s46, s27, 2
    s_add_u32 s46, s46, s25
    s_mul_i32 s47, s46, {QKV_TB}
    s_lshl_b32 s33, s26, 11
    s_add_u32 s47, s47, s33
    v_lshlrev_b32 v26, 3, v31
    v_lshl_add_u32 v26, v12, 8, v26
    v_add_u32 v26, s47, v26
    s_mul_i32 s47, s46, {HO_TB}
    s_add_u32 s47, s47, s33
    v_lshlrev_b32 v27, 4, v31
    v_lshl_add_u32 v27, v12, 9, v27
    v_add_u32 v27, s47, v27
    v_mov_b32 v10, 0
    v_mov_b32 v11, 0
    v_lshrrev_b32 v16, 4, v0
    v_xor_b32 v16, v16, v0
    v_and_b32 v16, 1, v16
    v_subrev_u32 v16, 1, v16
    v_and_b32 v16, s45, v16
    v_mov_b32 v17, v16
    v_mov_b32 v18, v16
    v_mov_b32 v19, v16
""")
    g("""s_mov_b32 s45, 0x3f803f80
    s_mov_b32 s93, 0xffff0000
    s_lshl_b32 s46, s24, 8
    s_add_u32 s46, s46, s2
    s_mul_i32 s47, s46, 6554
    s_lshr_b32 s47, s47, 16
    s_mul_i32 s33, s47, 10
    s_sub_u32 s33, s46, s33
    s_mul_i32 s88, s47, 40
    s_lshl_b32 s89, s33, 2
    s_add_u32 s88, s88, s89
    s_lshl_b32 s88, s88, 10
    s_lshl_b32 s33, s33, 7
    s_sub_u32 s89, s47, 48
    s_cmp_ge_u32 s47, 48
    s_cselect_b32 s47, s89, s47
    s_cselect_b32 s80, s8, s16
    s_cselect_b32 s81, s9, s17
    s_cselect_b32 s90, 8, 4
    s_cselect_b32 s91, 4, 8
    s_lshl_b32 s91, s91, 7
    s_mul_i32 s47, s47, 40960
    s_add_u32 s47, s47, s33
    s_add_u32 s80, s80, s47
    s_addc_u32 s81, s81, 0
    s_mov_b32 s82, %d
    s_mov_b32 s83, 0x20000
    s_mov_b32 s89, s46
    s_lshl_b32 s33, s24, 12
    s_add_u32 s92, s33, %d
    s_lshl_b32 s46, s26, 10
    s_add_u32 s46, s46, %d
    v_and_b32 v31, 31, v0
    v_lshl_add_u32 v31, v31, 4, s46
    s_lshl_b32 s3, s25, 2
    s_add_u32 s3, s3, s46
    s_lshl_b32 s10, s25, 10
    s_add_u32 s10, s10, %d
    s_lshl_b32 s11, s26, 9"""%(31*1280+128,(35%NB)*16384,EX,EX+6144))
    srd(g,84,"s18","s19",W2_OFF,68*40*1024)
    CS={0:20,1:12,2:20}
    WA=[1,2,3,25]; wbase=[0,0,0,0]
    def info(n):
        if n<80: return (n//8,(n%8)//2,n%2,4*(n//8)+(n%8)//2,n%2,n<2)
        if n<120:
            m=n-80; return (n//8,m%4,(m%8)//4,m,2,m==0)
        m=n-120; return (n//8,(m%8)//2,m%2,4*(m//8)+(m%8)//2,m%2,m<2)
    def isd(n):
        p=n%8
        return 0 if p==0 else (1 if p==(4 if 80<=n<120 else 5) else None)
    freg={}; cnt=0
    for n in range(200):
        freg[n]=WF+4*(cnt%NWF); cnt+=1
    def step_items(s): return [2*s,2*s+1] if s<10 else [10+s]
    ftok={}; xtok={}; nxt=[NI]; prebar=[]
    def w2dma():
        LS=g.label("K1S")
        g(f"s_cmp_ge_u32 s89, 680\ns_cbranch_scc1 {LS}")
        for t in range(4):
            g(f"s_add_u32 m0, s92, {t*1024}\ns_mov_b32 s33, {t*8*1280}")
            g.vmem("buffer_load_dwordx4 v4, s[80:83], s33 offen lds",'maybe')
        g(f"{LS}:")
    BM=int(os.environ.get("BM","3")); pend=[]
    def burst(lst,br,keep):
        if not lst: return
        L=g.label("K1B"); st=g.state(); tk0=dict(tok)
        g(f"{br} {L}")
        for it in lst:
            if it==35: w2dma()
            else: issue(it)
        g(f"{L}:")
        if not keep: g.vm=st[0]; tok.clear(); tok.update(tk0)
    def reads(n):
        if n>200: return
        if n%8==0:
            s=n//8
            if "pp" in OPT: burst(pend,"s_cbranch_vccz",True); pend.clear()
            if n==200: return
            while prebar: g.lwait(prebar.pop())
            if "early" in OPT: g.lwait0()
            g.vwait(tok[step_items(s)[-1]])
            g("s_barrier")
            if s in (0,10,15,20): stamp(g,1+s//5)
            if "pp" in OPT:
                allowed=NB+sum(len(step_items(q)) for q in range(s if "early" in OPT else s-1))
                while nxt[0]<allowed and nxt[0]<=35 and len(pend)<BM: pend.append(nxt[0]); nxt[0]+=1
                burst(pend,"s_cbranch_vccnz",False)
        s,i,sub,ks,a,first=info(n)
        if n<80 and n%2==0:
            base=((2*s)%NB)*16384
            if base<65536: xtok[ks]=g.ds(f"ds_read_b128 {vr(XR+4*ks,4)}, v{4+i} offset:{base}")
            else:
                g(f"v_add_u32 v30, {base}, v{4+i}"); xtok[ks]=g.ds(f"ds_read_b128 {vr(XR+4*ks,4)}, v30")
        off=(step_items(s)[-1]%NB)*16384
        if not (0<=off-wbase[i]<=49152):
            g(f"v_add_u32 v{WA[i]}, {(off-wbase[i])&0xffffffff}, v{WA[i]}"); wbase[i]=off
        off=off-wbase[i]+sub*8192; r=freg[n]
        g.ds(f"ds_read_b64_tr_b16 {vr(r,2)}, v{WA[i]} offset:{off}")
        ftok[n]=g.ds(f"ds_read_b64_tr_b16 {vr(r+2,2)}, v{WA[i]} offset:{off+512}")
        allowed=NB+sum(len(step_items(q)) for q in range(s if 'early' in OPT else s-1))
        if 'pp' not in OPT and n%2==1 and nxt[0]<allowed and nxt[0]<=35:
            if nxt[0]==35: w2dma()
            else: issue(nxt[0])
            nxt[0]+=1
    def cs_put(a):
        def f():
            g("v_and_b32 v30, 0x31, v0\nv_mul_u32_u24 v30, 0x104, v30\nv_and_b32 v30, 0x1c0, v30\nv_add_u32 v30, s3, v30\ns_nop 4") if a!=1 else None
            for j in range(4): prebar.append(g.ds(f"ds_write_b32 v30, v{CS[a]+j} offset:{a*2048+16*j}"))
        return [("f",f)]
    tk={}
    def corr(a,T):
        return [("f",lambda: tk.__setitem__(a,g.ds(f"ds_read_b128 {vr(T,4)}, v31 offset:{a*2048}"))),None,None,None,None,None,None,
                ("f",lambda: g.lwait(tk[a])),f"v_add_f32 v{T}, v{T}, v{T+1}",f"v_add_f32 v{T+2}, v{T+2}, v{T+3}",f"v_add_f32 v{T}, v{T}, v{T+2}",
                f"v_cvt_pk_bf16_f32 v{T+2}, v{T}, v{T}",f"v_and_b32 v{T+2}, s93, v{T+2}",f"v_sub_f32 v{T+3}, v{T}, v{T+2}",
                f"v_cvt_pk_bf16_f32 v{T+2}, v{T}, v{T+3}\nv_cvt_pk_bf16_f32 v{T+3}, v{T}, v{T+3}\ns_nop 1\n"
                f"v_mfma_f32_32x32x8bf16_1k {vr(ACC[a],16)}, {vr(T+2,2)}, v[10:11], {vr(ACC[a],16)}"]
    st_put=[("f",lambda: (g("v_lshl_add_u32 v30, v0, 3, s10\nv_add_u32 v30, s11, v30"),prebar.append(g.ds("ds_write_b64 v30, v[10:11]"))))]
    stats=[("f",lambda: (g("v_lshl_add_u32 v30, v0, 3, s10\nv_add_u32 v30, s11, v30\nv_xor_b32 v30, 512, v30"),tk.__setitem__('s',g.ds("ds_read_b64 v[4:5], v30")))),
           None,None,None,None,None,None,("f",lambda: g.lwait(tk['s'])),
           "v_add_f32 v14, v10, v4","v_add_f32 v15, v11, v5",
           "v_mov_b32 v4, v14","v_mov_b32 v5, v15","s_nop 1\nv_permlane32_swap_b32 v14, v4\nv_permlane32_swap_b32 v15, v5",
           "v_add_f32 v14, v14, v4","v_add_f32 v15, v15, v5",f"v_mul_f32 v14, {f32(-1/640)}, v14",f"v_mul_f32 v15, {f32(1/640)}, v15",
           "v_fma_f32 v15, -v14, v14, v15","v_max_f32 v15, 0, v15","v_mul_f32 v14, 0.5, v14",f"v_add_f32 v15, {f32(1e-5)}, v15","v_rsq_f32 v24, v15",
           "v_cvt_pk_bf16_f32 v10, v14, v14","v_and_b32 v4, s93, v10","v_sub_f32 v4, v14, v4","v_cvt_pk_bf16_f32 v11, v4, v4",
           "v_mul_f32 v28, v24, v24"]
    def epi_qkv(a,ssc,sso,T=14):
        A=ACC[a]; o=[f"v_mul_f32 v{T}, {ssc}, v24"]; m0,m1=("s_mov_b64 exec, s[96:97]\n","\ns_mov_b64 exec, -1") if a==2 else ("","")
        for gq in range(4):
            r=A+4*gq
            o+=[f"v_mul_f32 v{r+k}, v{r+k}, v{T}" for k in range(4)]
            o+=[f"v_cvt_pk_bf16_f32 v{r}, v{r}, v{r+1}",f"v_cvt_pk_bf16_f32 v{r+1}, v{r+2}, v{r+3}",
                ("st",m0+f"buffer_store_dwordx2 {vr(r,2)}, v26, s[72:75], {sso} offen offset:{gq*512}{' sc1' if 'qsc1' in OPT else ''}"+m1)]
        return o
    def epi_ffn(sso,pk=False):
        A,B=ACC[0],ACC[1]; o=[]
        for h in range(2):
            r=A+8*h; q=B+8*h
            if pk:
                for k in range(0,8,2): o.append(f"v_pk_mul_f32 {vr(r+k,2)}, {vr(r+k,2)}, {vr(q+k,2)}")
                for k in range(0,8,2): o.append(f"v_pk_mul_f32 {vr(r+k,2)}, {vr(r+k,2)}, v[28:29] op_sel:[0,0] op_sel_hi:[1,0]")
            else:
                for k in range(8): o.append(f"v_mul_f32 v{r+k}, v{r+k}, v{q+k}")
                for k in range(8): o.append(f"v_mul_f32 v{r+k}, v{r+k}, v28")
            for k in range(4): o.append(f"v_cvt_pk_bf16_f32 v{r+k}, v{r+2*k}, v{r+2*k+1}")
            o.append(("st",f"buffer_store_dwordx4 {vr(r,4)}, v27, s[76:79], {sso} offen offset:{h*1024}{' sc1' if ('hsc1' in OPT and not pk) or ('hsc2' in OPT and pk) else ''}"))
        return o
    GAP=[None]*8; csq=[]
    def emit_side(op):
        if op is None: return
        if isinstance(op,tuple):
            if op[0]=="st": g.vmem(op[1],'st')
            else: op[1]()
        else: g(op)
    def run(n0,n1,sched,per):
        side=[]
        for n in range(n0,n1):
            side+=sched.get(n,[])
            s,i,sub,ks,a,first=info(n)
            if n<80: g.lwait(xtok[ks])
            g.lwait(ftok[n]); r=freg[n]
            g(f"v_mfma_f32_32x32x16_bf16 {vr(ACC[a],16)}, {vr(r,4)}, {vr(XR+4*ks,4)}, {'0' if first else vr(ACC[a],16)}")
            if isd(n) is not None and "nocs" not in OPT:
                c=vr(CS[a],4); f0 = n in (0,5,80,120,125)
                g(f"v_mfma_f32_16x16x32_bf16 {c}, {vr(r,4)}, v[16:19], {'0' if f0 else c}")
            if n<80 and n%8==2 and "vst" in OPT:
                for k in range(8):
                    x=XR+16*s+k
                    side+=[f"v_lshlrev_b32 v24, 16, v{x}\nv_and_b32 v28, s93, v{x}\nv_fmac_f32 v11, v24, v24\nv_add_f32 v10, v10, v24",
                           f"v_fmac_f32 v11, v28, v28\nv_add_f32 v10, v10, v28"]
            elif n<80 and n%8==4 and "nost" not in OPT and "vst" not in OPT:
                for k in range(8):
                    x=XR+16*s+k
                    g(f"v_dot2c_f32_bf16 v10, s45, v{x}\nv_dot2c_f32_bf16 v11, v{x}, v{x}")
            reads(n+NWF)
            for _ in range(per):
                if side: emit_side(side.pop(0))
        assert not side, len(side)
    for n in range(NWF): reads(n)
    run(0,80,{79:cs_put(0)+cs_put(1)+st_put},4 if 'vst' in OPT else 3); assert not csq
    LY=g.label("K1Y"); LJ=g.label("K1J")
    g(f"s_cmp_eq_u32 s29, 1\ns_cbranch_scc1 {LY}")
    st=g.state(); sv=(dict(ftok),list(nxt),list(wbase),list(prebar),list(pend))
    run(80,120,{85:stats+corr(0,4)+corr(1,4)+GAP+epi_ffn("s38"),119:cs_put(2)},4); assert not csq
    g(f"s_branch {LJ}\n{LY}:")
    endX=g.state()
    g.restore(st); ftok.update(sv[0]); nxt[0]=sv[1][0]; wbase[:]=sv[2]; prebar[:]=sv[3]; pend[:]=sv[4]
    run(80,120,{85:stats+corr(0,4)+corr(1,4)+GAP+epi_qkv(0,"s42","s38")+epi_qkv(1,"s43","s39"),119:cs_put(2)},4); assert not csq
    g(f"{LJ}:")
    assert [k for k in endX[0] if k=='ld']==[k for k in g.vm if k=='ld'] and endX[1]==g.lg
    g.lg_done=min(g.lg_done,endX[3]); g.lwait0(); g.vm=['maybe' if k=='st' else k for k in g.vm]
    w2v=["v_lshrrev_b32 v4, 3, v0","v_and_b32 v5, 7, v0","v_lshlrev_b32 v5, 4, v5","v_mul_u32_u24 v4, 1280, v4","v_add_u32 v4, v4, v5",
        "v_lshrrev_b32 v5, 5, v0","v_bfe_u32 v6, v0, 4, 1","v_mul_u32_u24 v6, s90, v6","v_lshl_add_u32 v5, v5, 4, v6","v_bfe_u32 v6, v0, 2, 2",
        "v_add_u32 v5, v5, v6","v_lshlrev_b32 v5, 7, v5","v_and_b32 v6, 3, v0","v_lshl_add_u32 v5, v6, 3, v5",
        "v_add_u32 v5, s92, v5","v_add_u32 v6, s91, v5","v_lshlrev_b32 v7, 4, v0"]
    c0=corr(0,XR); c1=corr(1,XR+4)
    sm=" sc1" if "ssc1" in OPT else ""
    sent=[f"v_mov_b32 v{XR+8+k}, -1" for k in range(4)]+[f"""s_lshr_b32 s33, s2, 2
    s_mul_i32 s33, s33, {HO_TB}
    s_and_b32 s46, s2, 3
    s_mul_i32 s46, s46, 10240
    s_add_u32 s33, s33, s46
    s_add_u32 s33, s33, {192*512}
    s_add_u32 s46, s33, s30
    v_lshl_add_u32 v{XR+12}, v0, 4, s46
    s_lshr_b32 s46, s30, 2
    s_add_u32 s33, s33, s46
    s_add_u32 s33, s33, 8192
    v_lshl_add_u32 v{XR+13}, v0, 2, s33""",("st",f"buffer_store_dwordx4 {vr(XR+8,4)}, v{XR+12}, s[76:79], 0 offen{sm}"),
    ("st",f"buffer_store_dword v{XR+8}, v{XR+13}, s[76:79], 0 offen{sm}")]
    W2N=int(os.environ.get("W2N","190"))
    def w2rep():
        LS=g.label("K1S")
        g(f"s_cmp_ge_u32 s89, 680\ns_cbranch_scc1 {LS}")
        g("s_waitcnt vmcnt(0)")
        for nb in range(4):
            g(f"ds_read_b64_tr_b16 {vr(XR+16+4*nb,2)}, v5 offset:{nb*32}\nds_read_b64_tr_b16 {vr(XR+18+4*nb,2)}, v6 offset:{nb*32}")
        g("s_waitcnt lgkmcnt(0)")
        for nb in range(4): g(f"buffer_store_dwordx4 {vr(XR+16+4*nb,4)}, v7, s[84:87], s88 offen offset:{nb*1024}{' sc1' if 'wsc1' in OPT else ''}")
        g(f"{LS}:")
    SN=int(os.environ.get("SN","150"))
    run(120,200,{120:w2v,126:corr(2,XR)+GAP+epi_qkv(2,"s44","s40",XR),SN:sent,W2N:[("f",w2rep)],198:cs_put(0)+cs_put(1)},3)
    stamp(g,6)
    g.lwait0(); g("s_barrier")
    for op in [c0[0],c1[0]]+c0[1:]+c1[1:]: emit_side(op)
    if W2N>=200: w2rep()
    g("s_nop 7\ns_nop 7")
    for op in epi_ffn("s41",True): emit_side(op)
    stamp(g,7)
    if "ts" in OPT: g("s_waitcnt vmcnt(0)")
    stamp(g,8); rstamp(g,63); stamp_store(g,0)
```

```python
from gfw import *
S=96; O=80; VOFF=36864; BS=3072
ACC=176; NST=4; FR=32; CNT=2560+64; PART=20480
AMAP="s_and_b32 s28, s47, 1\ns_lshl_b32 s46, s46, 1\ns_add_u32 s28, s28, s46\ns_lshr_b32 s27, s47, 1"
def k23_body(g):
    stamp_init(g,25); rstamp(g,62); stamp(g,0)
    g(f"""s_load_dwordx2 s[18:19], s[0:1], 72
    s_load_dwordx2 s[4:5], s[0:1], 0
    s_load_dwordx2 s[20:21], s[0:1], 56""")
    codepf(g,88,"parallel_sum__sliding_block__glu_gated_bilinear__prompt_kernel","B")
    g(f"""v_mov_b32 v1, v0
    v_lshrrev_b32 v2, 6, v0
    v_and_b32 v0, 63, v0
    v_readfirstlane_b32 s24, v2
    s_and_b32 s46, s2, 7
    s_lshr_b32 s47, s2, 3
    s_lshr_b32 s27, s46, 1
    s_lshl_b32 s27, s27, 2
    s_and_b32 s33, s47, 3
    s_add_u32 s27, s27, s33
    s_and_b32 s28, s46, 1
    s_lshl_b32 s28, s28, 3
    s_lshr_b32 s33, s47, 2
    s_add_u32 s28, s28, s33
    s_lshr_b32 s23, s28, 1
    s_and_b32 s22, s28, 1
    s_lshl_b32 s33, s27, 1
    s_add_u32 s22, s22, s33
    s_and_b32 s25, s24, 3
    {"" if "loc" in OPT else AMAP}
    v_lshrrev_b32 v2, 4, v0
    v_lshlrev_b32 v3, 1, v2
    v_and_b32 v4, 15, v0
    v_xor_b32 v3, v3, v4
    v_lshlrev_b32 v3, 4, v3
    v_lshl_add_u32 v8, v2, 8, v3
    v_xor_b32 v9, 0x80, v8
    s_lshl_b32 s29, s27, 2
    s_sub_u32 s29, s29, 8
    s_mul_i32 s30, s28, 2560
    s_waitcnt lgkmcnt(0)""")
    srd(g,72,"s18","s19",None,64*QKV_TB)
    stg={}
    g(f"""s_cmp_lt_u32 s24, 4
    s_cselect_b32 s34, 40960, 0
    s_cselect_b32 s35, {12*BS}, 0
    s_add_u32 s34, s34, s30
    s_add_u32 s34, s34, 40960
    s_mul_i32 s33, s25, {BS}
    s_add_u32 s35, s35, s33
    s_add_i32 s36, s25, s29""")
    for j in range(3):
        g(f"""s_add_u32 m0, s35, {4*j*BS}
        s_add_i32 s33, s36, {4*j}
        s_max_i32 s33, s33, 0
        s_mul_i32 s33, s33, {QKV_TB}
        s_add_u32 s33, s33, s34""")
        g.vmem(f"buffer_load_dwordx4 v8, s[72:75], s33 offen lds")
        g.vmem(f"buffer_load_dwordx4 v9, s[72:75], s33 offen offset:1024 lds")
        g("s_mov_b32 exec_hi, 0")
        stg[j]=g.vmem(f"buffer_load_dwordx4 v8, s[72:75], s33 offen offset:2048 lds")
        g("s_mov_b32 exec_hi, -1")
    srd(g,76,"s18","s19",HO_OFF,64*HO_TB)
    g(f"s_mul_i32 s33, s22, {2*HO_TB}\ns_add_u32 s33, s33, {HO_OFF}")
    srd(g,80,"s18","s19","s33",2*HO_TB)
    srd(g,84,"s18","s19",W2_OFF,68*40*1024)
    g(f"s_mul_i32 s33, s22, {64*1280}\ns_mul_i32 s34, s23, 160\ns_add_u32 s33, s33, s34")
    srd(g,8,"s4","s5","s33",63*1280+160); srd(g,12,"s20","s21","s33",63*1280+160)
    def coff(k): return 40960 if k==3 else CNT+k*BS
    def arrive(k,z,t): g(f"v_mov_b32 v{t}, 1\ns_mov_b64 exec, 1"); g.ds(f"ds_add_u32 v{z}, v{t} offset:{coff(k)}"); g("s_mov_b64 exec, -1")
    def spin(k,z,t,n):
        L=g.label("SP")
        g(f"""s_mov_b32 s33, 0x200000
        {L}:
        ds_read_b32 v{t}, v{z} offset:{coff(k)}
        s_sub_u32 s33, s33, 1
        s_cbranch_scc1 {L}_E
        s_waitcnt lgkmcnt(0)
        v_readfirstlane_b32 s35, v{t}
        s_cmp_lt_u32 s35, {n}
        s_cbranch_scc1 {L}
        {L}_E:"""); g.lwait0()
    LA=g.label("ATT"); LR=g.label("RED")
    def gaddr(j0):
        g(f"""v_lshlrev_b32 v4, 4, v0
        v_add_u32 v5, 4096, v4
        v_lshrrev_b32 v2, 4, v0
        v_and_b32 v3, 15, v0
        v_lshlrev_b32 v6, 4, v3
        v_lshl_add_u32 v6, v2, 9, v6
        v_add_u32 v7, {HO_TB}, v6
        s_mul_i32 s16, s25, 40960
        s_mul_i32 s33, s23, 5120
        s_add_u32 s16, s16, s33
        s_lshl_b32 s17, s25, 11
        s_mul_i32 s38, {j0}, {4*40960}
        s_add_u32 s38, s38, s16
        s_lshl_b32 s39, {j0}, 13
        s_add_u32 s39, s39, s17""")
    tk={}; to={}; LKA=int(os.environ.get("LKA","3"))
    def ldw(j):
        b=FR+36*(j%NST); o=[]
        for nb in range(5): o.append(lambda nb=nb: tk.__setitem__((j,nb),g.vmem(f"buffer_load_dwordx4 {vr(b+4*nb,4)}, v{4+nb//4}, s[84:87], s38 offen offset:{(nb%4)*1024}"+(f"\ns_add_u32 s38, s38, {4*40960}" if nb==4 else ""))))
        return o
    def oreg(j,tg): return FR+36*(j%NST)+20+4*tg
    def ldh(j):
        o=[]
        for tg in range(4): o.append(lambda tg=tg: to.__setitem__((j,tg),g.vmem(f"buffer_load_dwordx4 {vr(oreg(j,tg),4)}, v{6+tg//2}, s[80:83], s39 offen offset:{(tg%2)*256}"+("\ns_add_u32 s39, s39, 8192" if tg==3 else ""))))
        return o
    def chk(j): g(f"v_max3_u32 v2, v{oreg(j,0)}, v{oreg(j,1)}, v{oreg(j,2)}\nv_max_u32 v2, v2, v{oreg(j,3)}\nv_cmp_eq_u32 vcc, -1, v2\ns_nop 3")
    def retry(q):
        g(f"RT_{q}:\ns_mov_b32 s33, 0x20000\nRTL_{q}:\ns_waitcnt vmcnt(0)\ns_mov_b32 s34, 0")
        for r in range(q,min(17,q+LKA)):
            chk(r); g(f"s_cbranch_vccz RTS_{q}_{r}\ns_mov_b32 s34, 1\ns_add_u32 s35, s37, {(r-12)*8192}")
            for tg in range(4): g(f"buffer_load_dwordx4 {vr(oreg(r,tg),4)}, v{6+tg//2}, s[80:83], s35 offen offset:{(tg%2)*256} sc1")
            g(f"RTS_{q}_{r}:")
        if "ts" in OPT: g(f"s_add_u32 s93, s93, s34")
        g(f"s_sub_u32 s33, s33, 1\ns_cselect_b32 s34, 0, s34\ns_cmp_lg_u32 s34, 0\ns_cbranch_scc1 RTL_{q}\ns_waitcnt vmcnt(0)\ns_branch RTB_{q}")
    def mm(j,ops):
        b=FR+36*(j%NST); per=-(-len(ops)//10)
        for x in range(20):
            nb,tg=x//4,x%4
            g.vwait(max(tk[j,nb],to[j,tg])); a=ACC+4*(nb*4+tg)
            g(f"v_mfma_f32_16x16x32_bf16 {vr(a,4)}, {vr(b+4*nb,4)}, {vr(oreg(j,tg),4)}, {'0' if j==0 else vr(a,4)}")
            if x%2==1 and "noil" not in OPT:
                for _ in range(per):
                    if ops: ops.pop(0)()
        while ops: ops.pop(0)()
    def xres():
        for k in range(2):
            g(f"""v_add_u32 v12, {512*k}, v1
            v_lshrrev_b32 v13, 7, v12
            v_bfe_u32 v14, v12, 5, 2
            v_and_b32 v15, 15, v12
            v_lshl_add_u32 v14, v14, 4, v15
            v_mul_u32_u24 v14, 1280, v14
            v_lshl_add_u32 v14, v13, 5, v14
            v_and_b32 v13, 16, v12
            v_add_u32 v{8+k}, v13, v14""")
            g.vmem(f"buffer_load_dwordx4 {vr(16+4*k,4)}, v{8+k}, s[8:11], 0 offen")
        g(f"""v_lshrrev_b32 v12, 4, v1
        v_lshlrev_b32 v12, 9, v12
        v_lshl_add_u32 v10, v15, 4, v12
        s_mul_i32 s33, s25, {PART}
        v_lshl_add_u32 v11, v0, 4, s33""")
    g(f"s_cmp_ge_u32 s24, 4\ns_cbranch_scc1 {LA}")
    st0=g.state()
    g("""s_and_b32 s33, s22, 7
    s_mul_i32 s33, s33, 3
    s_lshr_b32 s33, s33, 1
    s_and_b32 s34, s23, 3
    s_mul_i32 s34, s34, 3
    s_add_u32 s33, s33, s34
    s_sub_u32 s34, s33, 12
    s_cmp_ge_u32 s33, 12
    s_cselect_b32 s35, s34, s33""")
    if "norot3" in OPT: g("s_mov_b32 s35, 0")
    if "rot2" in OPT: g("s_add_u32 s35, s22, s23\ns_and_b32 s35, s35, 1\ns_mul_i32 s35, s35, 6")
    if "rot4" in OPT: g("s_add_u32 s35, s22, s23\ns_and_b32 s35, s35, 3\ns_mul_i32 s35, s35, 3")
    gaddr("s35")
    g(f"s_add_u32 s36, s16, {48*40960}\ns_add_u32 s37, s17, {12*8192}")
    SPJ=int(os.environ.get("SPJ","0"))
    def loads(j):
        if j<12: return ldh(j)+ldw(j)+[lambda: g("s_cmp_eq_u32 s38, s36\ns_cselect_b32 s38, s16, s38\ns_cselect_b32 s39, s17, s39" if j<11 else "s_mov_b32 s38, s36\ns_mov_b32 s39, s37")]
        o=ldw(j) if j<17 else []
        for q in range(12,17):
            if max(q,SPJ+LKA)==j: o+=ldh(q)
        return o
    g(f"""v_lshrrev_b32 v12, 4, v1
    v_mul_u32_u24 v12, {BS}, v12
    v_and_b32 v13, 15, v1
    v_lshl_add_u32 v12, v13, 4, v12
    v_mov_b32 v16, 0x3f803f80
    v_mov_b32 v17, v16
    v_mov_b32 v18, v16
    v_mov_b32 v19, v16
    v_subrev_u32 v13, 192, v1
    v_mul_u32_u24 v14, {BS}, v13
    v_add_u32 v20, s29, v13
    v_mov_b32 v21, 0x3f80
    v_cmp_gt_i32 vcc, 0, v20
    s_cmp_eq_u32 s24, 3
    s_cbranch_scc1 W3_INIT
    ds_write_b128 v12, v[16:19] offset:{VOFF+2560}
    s_branch W3_DONE
    W3_INIT:
    v_cndmask_b32 v20, 0, v21, vcc
    v_mov_b32 v21, 0
    s_mov_b64 exec, 0xfff
    ds_write_b64 v14, v[20:21] offset:2560
    ds_write_b32 v14, v21 offset:{CNT}
    v_mov_b32 v14, 40960
    ds_write_b32 v14, v21 offset:40960
    s_mov_b64 exec, -1
    W3_DONE:""")
    g.lwait0()
    NPRE=int(os.environ.get("NPRE","0")); VAJ=int(os.environ.get("VAJ","0"))
    g("s_barrier"); stamp(g,1)
    for j in range(LKA):
        for op in loads(j): op()
        if j==VAJ: g("v_mov_b32 v2, 0"); g.vwait(stg[2]); arrive(2,2,3)
    if "ts" in OPT: g("s_mov_b32 s93, 0")
    for j in range(17):
        if j>=12:
            g.vwait(to[j,3]); chk(j); g(f"s_cbranch_vccnz RT_{j}\nRTB_{j}:")
            if j==12: stamp(g,6); rstamp(g,53)
        if j==max(12-LKA,SPJ): stamp(g,5); rstamp(g,54)
        mm(j,loads(j+LKA))
        if j in (0,5): stamp(g,2+j//5)
        if j==13: xres()
        if j==15: g("v_mov_b32 v2, 40960"); spin(3,2,3,4)
    g("s_nop 7")
    stamp(g,7)
    if "ts" in OPT: g("v_writelane_b32 v25, s93, 52")
    for f in range(20): g.ds(f"ds_write_b128 v11, {vr(ACC+4*f,4)} offset:{f*1024}")
    g.vwait0(); g(f"s_branch {LR}")
    for q in range(12,17): retry(q)
    g(f"{LA}:")
    g.restore(st0)
    if "prio" in OPT: g("s_setprio 1")
    g(f"""v_lshrrev_b32 v2, 5, v0
    v_and_b32 v3, 31, v0
    s_lshl_b32 s31, s27, 2
    s_add_u32 s31, s31, s25
    s_mul_i32 s33, s31, {QKV_TB}
    s_add_u32 s33, s33, s30
    v_lshlrev_b32 v4, 3, v3
    v_lshl_add_u32 v5, v2, 9, v4""")
    for hh,q in ((0,16),(1,72)):
        g.vmem(f"buffer_load_dwordx2 {vr(q,2)}, v5, s[72:75], s33 offen offset:{1280*hh}")
        g.vmem(f"buffer_load_dwordx2 {vr(q+2,2)}, v5, s[72:75], s33 offen offset:{1280*hh+256}")
        qtok=g.vmem(f"buffer_load_dwordx2 {vr(q+4,2)}, v4, s[72:75], s33 offen offset:{1280*hh+1024}")
    g("s_barrier")
    g("v_lshlrev_b32 v6, 2, v2\nv_sub_u32 v6, v3, v6\nv_mov_b32 v7, 0xffff\nv_mov_b32 v13, 0xffff0000")
    for r in range(16): g(f"v_cmp_le_i32 s[{40+2*r}:{41+2*r}], {8*(r//4)+r%4}, v6")
    for k in range(8):
        g(f"v_cndmask_b32 v14, 0, v7, s[{40+4*k}:{41+4*k}]\nv_cndmask_b32 v15, 0, v13, s[{42+4*k}:{43+4*k}]\nv_or_b32 v{64+k}, v14, v15")
    g(f"s_mul_i32 s34, s25, {BS}\nv_cmp_lt_u32 vcc, 31, v0")
    KF=[248,32,38]
    def setup(hh):
        g(f"""v_lshrrev_b32 v6, 1, v3
        v_and_b32 v7, 1, v3
        v_lshlrev_b32 v7, 3, v7
        v_add_u32 v7, s34, v7""")
        for (d,expr) in ((10,f"v_lshl_add_u32 v13, v2, 1, {5*hh}"),(11,"v_add_u32 v13, 1, v13"),(12,f"v_mov_b32 v13, {5*hh+4}")):
            g(expr)
            g(f"""v_and_b32 v14, 7, v13
            v_lshlrev_b32 v14, 1, v14
            v_xor_b32 v14, v14, v6
            v_lshl_add_u32 v14, v14, 4, v7
            v_lshl_add_u32 v{d}, v13, 8, v14""")
        g(f"""s_add_u32 s35, s34, 2560
        v_mov_b32 v13, s35
        v_cndmask_b32 v12, v12, v13, vcc""")
    def setup2(hh):
        return f"""v_bfe_u32 v6, v0, 4, 1
        v_and_b32 v7, 3, v0
        v_lshl_add_u32 v6, v6, 2, v7
        v_add_u32 v7, {5*hh}, v6
        v_and_b32 v4, 7, v7
        v_lshlrev_b32 v4, 1, v4
        v_bfe_u32 v5, v0, 3, 1
        v_lshl_add_u32 v5, v2, 1, v5
        v_xor_b32 v4, v4, v5
        v_lshlrev_b32 v4, 4, v4
        v_bfe_u32 v5, v0, 2, 1
        v_lshl_add_u32 v4, v5, 3, v4
        v_cmp_lt_u32 s[36:37], 4, v6
        v_lshlrev_b32 v7, 8, v7
        v_mov_b32 v5, 2560
        s_add_u32 s35, s34, {VOFF}
        v_cndmask_b32 v7, v7, v5, s[36:37]
        v_add3_u32 v28, v7, v4, s35
        v_xor_b32 v29, 64, v28
        v_xor_b32 v30, 128, v28
        v_xor_b32 v31, 192, v28
        s_mul_i32 s33, s28, 2560
        v_lshlrev_b32 v6, 4, v3
        v_lshl_add_u32 v6, v2, 9, v6
        s_mul_i32 s35, s31, {HO_TB}
        s_add_u32 s33, s33, s35
        s_add_u32 s33, s33, {192*512}
        v_add_u32 v15, s33, v6""".split("\n")[:(28,21)[hh]]
    setup(0)
    g("v_mov_b32 v22, 0\nv_mov_b32 v6, 0xf149\nv_mov_b32 v56, 0x3f803f80\nv_mov_b32 v57, 0\nv_mov_b32 v27, 0\nv_cndmask_b32 v56, v56, v57, vcc")
    g.vwait(stg[2]); arrive(1,22,26); g.vwait(qtok)
    g("v_cndmask_b32 v20, v20, v6, vcc\nv_cndmask_b32 v21, v21, v22, vcc\nv_cndmask_b32 v76, v76, v6, vcc\nv_cndmask_b32 v77, v77, v22, vcc")
    spin(1,22,6,4); stamp(g,1)
    orders=([0,8,1,2,3,4,5,6,7],[1,2,0,8,3,4,5,6,7]); kt={}; pos={}; PER=int(os.environ.get("PER","6"))
    def kread(hh,i):
        if i>=9: return
        t=orders[hh][i]; k=KF[i%3]
        g.ds(f"ds_read_b64 {vr(k,2)}, v10 offset:{t*BS}"); g.ds(f"ds_read_b64 {vr(k+2,2)}, v11 offset:{t*BS}")
        kt[hh,i]=g.ds(f"ds_read_b64 {vr(k+4,2)}, v12 offset:{t*BS}")
    def mx(t,first):
        b=S+16*t; o=[]
        for k in range(0,16,2):
            a=f"v{13+(k//2)%2}"
            if first and k<4: o.append(f"v_max_f32 {a}, v{b+k}, v{b+k+1}")
            else: o.append(f"v_max3_f32 {a}, v{b+k}, v{b+k+1}, {a}")
        return o
    def sw(a,b): return [f"v_permlane32_swap_b32 v{a}, v{b}",f"v_permlane32_swap_b32 v{a+1}, v{b+1}"]
    def norm(hh):
        o=[f"v_rcp_f32 v254, v{O+12}\ns_nop 0"]
        for gq in range(3):
            r=O+4*gq; d=((58,60,240),(242,244,62))[hh][gq]
            o+=[f"v_mul_f32 v{r+k}, v{r+k}, v254" for k in range(4)]
            o+=[f"v_cvt_pk_bf16_f32 v{d}, v{r}, v{r+1}",f"v_cvt_pk_bf16_f32 v{d+1}, v{r+2}, v{r+3}"]
        if hh==0: o+=sw(58,60)+["buffer_store_dwordx4 v[58:61], v15, s[76:79], 0 offen sc1"]
        else: o+=sw(242,244)+sw(246,62)+sw(240,244)+["buffer_store_dwordx4 v[240:243], v15, s[76:79], 0 offen offset:1024 sc1",
            "s_mov_b32 exec_lo, 0\nbuffer_store_dwordx4 v[244:247], v15, s[76:79], 0 offen offset:1536 sc1\ns_mov_b32 exec_lo, -1"]
        return o
    VF=[32,36,40,44,48,52]; vt={}
    seq=[(t,m) for t in [1,2,3,4,5,6,7,8,0] for m in range(2)]
    def vread(i):
        if i>=18: return
        t,m=seq[i]; r=VF[i%6]
        g.ds(f"ds_read_b64_tr_b16 {vr(r,2)}, v{28+2*m} offset:{t*BS}")
        vt[i]=g.ds(f"ds_read_b64_tr_b16 {vr(r+2,2)}, v{29+2*m} offset:{t*BS}")
    def pv(i):
        t,m=seq[i]; g.lwait(vt[i])
        g(f"v_mfma_f32_32x32x16_bf16 {vr(O,16)}, {vr(VF[i%6],4)}, {vr(S+16*t+8*m,4)}, {'0' if i==0 else vr(O,16)}"); pos['pv',i]=len(g.L)
        vread(i+6)
    def item(hh,Q):
        order=orders[hh]; q=[(o,None) for o in setup2(hh)]; first=True
        for t in order:
            if t==0:
                if hh==1: q+=[(o,('pv',17)) for o in norm(0)]
                continue
            if t==8: q+=[(f"v_cndmask_b32 v{S+128+r}, v{S+r}, v{S+128+r}, s[{40+2*r}:{41+2*r}]",(hh,8)) for r in range(16)]
            q+=[(o,(hh,t)) for o in mx(t,first)]; first=False
        def pop(n,force=False):
            while n>0 and q:
                o,d=q[0]
                if d is not None:
                    if d not in pos: return
                    lack=12-(len(g.L)-pos[d])
                    if lack>0:
                        if not force: return
                        g(f"s_nop {min(lack,8)-1}")
                        if lack>8: g(f"s_nop {lack-9}")
                        pos[d]=-99
                g(o); q.pop(0); n-=1
        for i in range(9):
            t=order[i]; k=KF[i%3]
            if hh==1 and i<2: pv(15+2*i); pop(PER)
            g.lwait(kt[hh,i])
            g(f"v_mfma_f32_32x32x16_bf16 {vr(S+16*t,16)}, {vr(k,4)}, {vr(Q,4)}, 0"); pop(PER)
            if hh==1 and i==0: pv(16); pop(PER)
            g(f"v_mfma_f32_32x32x8bf16_1k {vr(S+16*t,16)}, {vr(k+4,2)}, {vr(Q+4,2)}, {vr(S+16*t,16)}"); pos[hh,t]=len(g.L)
            kread(hh,i+3)
            if i==8:
                if hh==0: spin(2,22,6,4)
                for x in range(6): vread(x)
            pop(PER if i>5 else PER-1)
        if "ts2" in OPT: stamp(g,10+3*hh)
        pop(99,True)
        g("""v_max_f32 v13, v13, v14
        v_mov_b32 v14, v13
        s_nop 1
        v_permlane32_swap_b32 v13, v14
        v_max_f32 v5, v13, v14
        v_cvt_pk_bf16_f32 v13, -v5, -v5
        v_and_b32 v13, 0xffff0000, v13
        v_sub_f32 v13, -v5, v13
        v_cvt_pk_bf16_f32 v26, -v5, v13
        s_nop 1""")
        def sub(t): g(f"v_mfma_f32_32x32x8bf16_1k {vr(S+16*t,16)}, v[56:57], v[26:27], {vr(S+16*t,16)}")
        sub(1); sub(2)
        if hh==0: setup(1)
        else: g("s_nop 7\ns_nop 3")
        if "ts2" in OPT: stamp(g,11+3*hh)
        for i in range(16):
            t,m=seq[i]; b=S+16*t+8*m
            for k in range(8):
                g(f"v_exp_f32 v{b+k}, v{b+k}")
                if k==1 and i>0: pv(i-1)
                if k==3 and hh==0 and i>=13: kread(1,i-13)
                if k==5 and m==0 and t+2<=8: sub(t+2)
            for k in range(4): g(f"v_cvt_pk_bf16_f32 v{b+k}, v{b+2*k}, v{b+2*k+1}")
            if t==8:
                for k in range(4):
                    b=S+128+8*m+k
                    g(f"v_and_b32 v{b+4}, v{64+4*m+k}, v{b}\nv_xor_b32 v{S+8*m+k}, v{b+4}, v{b}\nv_mov_b32 v{b}, v{b+4}")
        g("s_nop 1")
        if "ts2" in OPT: stamp(g,12+3*hh)
        if hh==1:
            for i in (15,16,17): pv(i)
            g("s_nop 7\ns_nop 3"); g("\n".join(norm(1)))
        stamp(g,2+hh)
    for i in range(3): kread(0,i)
    item(0,16); item(1,72)
    rstamp(g,50); g("v_mov_b32 v7, 40960\ns_setprio 0"); arrive(3,7,6)
    if "ts" in OPT: g.vwait0(); rstamp(g,51)
    stamp(g,5); xres(); g.vwait0()
    g(f"{LR}:")
    g.lwait0(); g("s_barrier"); stamp(g,8)
    g("v_add_u32 v11, 40960, v10")
    def red(k):
        for w in range(4):
            for h in range(2): g(f"ds_read_b128 {vr(32+8*w+4*h,4)}, v{10+w//2} offset:{(w%2)*PART+256*h+16384*k}")
        for w in range(1,4):
            g(f"s_waitcnt lgkmcnt({6-2*w})")
            for q in range(0,8,2): g(f"v_pk_add_f32 {vr(32+q,2)}, {vr(32+q,2)}, {vr(32+8*w+q,2)}")
        for q in range(4):
            x=16+4*k+q
            g(f"v_lshlrev_b32 v28, 16, v{x}\nv_and_b32 v29, 0xffff0000, v{x}\nv_pk_add_f32 {vr(32+2*q,2)}, {vr(32+2*q,2)}, v[28:29]")
            g(f"v_cvt_pk_bf16_f32 v{x}, v{32+2*q}, v{32+2*q+1}")
        g(f"buffer_store_dwordx4 {vr(16+4*k,4)}, v{8+k}, s[12:15], 0 offen{' sc1' if 'osc1' in OPT else ''}")
    red(0)
    g("s_cmp_ge_u32 s24, 2\ns_cbranch_scc1 RED_DONE"); red(1); g("RED_DONE:")
    stamp(g,9); rstamp(g,63); stamp_store(g,1)
```

```python
from gfw import *
S=96; O=80; VOFF=36864; BS=3072
ACC=176; NST=4; FR=32; CNT=2560+64; PART=20480
AMAP="s_and_b32 s28, s47, 1\ns_lshl_b32 s46, s46, 1\ns_add_u32 s28, s28, s46\ns_lshr_b32 s27, s47, 1"
def k23_body(g):
    stamp_init(g,25); rstamp(g,62); stamp(g,0)
    g(f"""s_load_dwordx2 s[18:19], s[0:1], 72
    s_load_dwordx2 s[4:5], s[0:1], 0
    s_load_dwordx2 s[20:21], s[0:1], 56""")
    codepf(g,88,"parallel_sum__sliding_block__glu_gated_bilinear__prompt_kernel","B")
    g(f"""v_mov_b32 v1, v0
    v_lshrrev_b32 v2, 6, v0
    v_and_b32 v0, 63, v0
    v_readfirstlane_b32 s24, v2
    s_and_b32 s46, s2, 7
    s_lshr_b32 s47, s2, 3
    s_lshr_b32 s27, s46, 1
    s_lshl_b32 s27, s27, 2
    s_and_b32 s33, s47, 3
    s_add_u32 s27, s27, s33
    s_and_b32 s28, s46, 1
    s_lshl_b32 s28, s28, 3
    s_lshr_b32 s33, s47, 2
    s_add_u32 s28, s28, s33
    s_lshr_b32 s23, s28, 1
    s_and_b32 s22, s28, 1
    s_lshl_b32 s33, s27, 1
    s_add_u32 s22, s22, s33
    s_and_b32 s25, s24, 3
    {"" if "loc" in OPT else AMAP}
    v_lshrrev_b32 v2, 4, v0
    v_lshlrev_b32 v3, 1, v2
    v_and_b32 v4, 15, v0
    v_xor_b32 v3, v3, v4
    v_lshlrev_b32 v3, 4, v3
    v_lshl_add_u32 v8, v2, 8, v3
    v_xor_b32 v9, 0x80, v8
    s_lshl_b32 s29, s27, 2
    s_sub_u32 s29, s29, 8
    s_mul_i32 s30, s28, 2560
    s_waitcnt lgkmcnt(0)""")
    srd(g,72,"s18","s19",None,64*QKV_TB)
    stg={}
    g(f"""s_cmp_lt_u32 s24, 4
    s_cselect_b32 s34, 40960, 0
    s_cselect_b32 s35, {12*BS}, 0
    s_add_u32 s34, s34, s30
    s_add_u32 s34, s34, 40960
    s_mul_i32 s33, s25, {BS}
    s_add_u32 s35, s35, s33
    s_add_i32 s36, s25, s29""")
    for j in range(3):
        g(f"""s_add_u32 m0, s35, {4*j*BS}
        s_add_i32 s33, s36, {4*j}
        s_max_i32 s33, s33, 0
        s_mul_i32 s33, s33, {QKV_TB}
        s_add_u32 s33, s33, s34""")
        g.vmem(f"buffer_load_dwordx4 v8, s[72:75], s33 offen lds")
        g.vmem(f"buffer_load_dwordx4 v9, s[72:75], s33 offen offset:1024 lds")
        g("s_mov_b32 exec_hi, 0")
        stg[j]=g.vmem(f"buffer_load_dwordx4 v8, s[72:75], s33 offen offset:2048 lds")
        g("s_mov_b32 exec_hi, -1")
    srd(g,76,"s18","s19",HO_OFF,64*HO_TB)
    g(f"s_mul_i32 s33, s22, {2*HO_TB}\ns_add_u32 s33, s33, {HO_OFF}")
    srd(g,80,"s18","s19","s33",2*HO_TB)
    srd(g,84,"s18","s19",W2_OFF,68*40*1024)
    g(f"s_mul_i32 s33, s22, {64*1280}\ns_mul_i32 s34, s23, 160\ns_add_u32 s33, s33, s34")
    srd(g,8,"s4","s5","s33",63*1280+160); srd(g,12,"s20","s21","s33",63*1280+160)
    def coff(k): return 40960 if k==3 else CNT+k*BS
    def arrive(k,z,t): g(f"v_mov_b32 v{t}, 1\ns_mov_b64 exec, 1"); g.ds(f"ds_add_u32 v{z}, v{t} offset:{coff(k)}"); g("s_mov_b64 exec, -1")
    def spin(k,z,t,n):
        L=g.label("SP")
        g(f"""s_mov_b32 s33, 0x200000
        {L}:
        ds_read_b32 v{t}, v{z} offset:{coff(k)}
        s_sub_u32 s33, s33, 1
        s_cbranch_scc1 {L}_E
        s_waitcnt lgkmcnt(0)
        v_readfirstlane_b32 s35, v{t}
        s_cmp_lt_u32 s35, {n}
        s_cbranch_scc1 {L}
        {L}_E:"""); g.lwait0()
    LA=g.label("ATT"); LR=g.label("RED")
    def gaddr(j0):
        g(f"""v_lshlrev_b32 v4, 4, v0
        v_add_u32 v5, 4096, v4
        v_lshrrev_b32 v2, 4, v0
        v_and_b32 v3, 15, v0
        v_lshlrev_b32 v6, 4, v3
        v_lshl_add_u32 v6, v2, 9, v6
        v_add_u32 v7, {HO_TB}, v6
        s_mul_i32 s16, s25, 40960
        s_mul_i32 s33, s23, 5120
        s_add_u32 s16, s16, s33
        s_lshl_b32 s17, s25, 11
        s_mul_i32 s38, {j0}, {4*40960}
        s_add_u32 s38, s38, s16
        s_lshl_b32 s39, {j0}, 13
        s_add_u32 s39, s39, s17""")
    tk={}; to={}; LKA=int(os.environ.get("LKA","3"))
    def ldw(j):
        b=FR+36*(j%NST); o=[]
        for nb in range(5): o.append(lambda nb=nb: tk.__setitem__((j,nb),g.vmem(f"buffer_load_dwordx4 {vr(b+4*nb,4)}, v{4+nb//4}, s[84:87], s38 offen offset:{(nb%4)*1024}"+(f"\ns_add_u32 s38, s38, {4*40960}" if nb==4 else ""))))
        return o
    def oreg(j,tg): return FR+36*(j%NST)+20+4*tg
    def ldh(j):
        o=[]
        for tg in range(4): o.append(lambda tg=tg: to.__setitem__((j,tg),g.vmem(f"buffer_load_dwordx4 {vr(oreg(j,tg),4)}, v{6+tg//2}, s[80:83], s39 offen offset:{(tg%2)*256}"+("\ns_add_u32 s39, s39, 8192" if tg==3 else ""))))
        return o
    def chk(j): g(f"v_max3_u32 v2, v{oreg(j,0)}, v{oreg(j,1)}, v{oreg(j,2)}\nv_max_u32 v2, v2, v{oreg(j,3)}\nv_cmp_eq_u32 vcc, -1, v2\ns_nop 3")
    def retry(q):
        g(f"RT_{q}:\ns_mov_b32 s33, 0x20000\nRTL_{q}:\ns_waitcnt vmcnt(0)\ns_mov_b32 s34, 0")
        for r in range(q,min(17,q+LKA)):
            chk(r); g(f"s_cbranch_vccz RTS_{q}_{r}\ns_mov_b32 s34, 1\ns_add_u32 s35, s37, {(r-12)*8192}")
            for tg in range(4): g(f"buffer_load_dwordx4 {vr(oreg(r,tg),4)}, v{6+tg//2}, s[80:83], s35 offen offset:{(tg%2)*256} sc1")
            g(f"RTS_{q}_{r}:")
        if "ts" in OPT: g(f"s_add_u32 s93, s93, s34")
        g(f"s_sub_u32 s33, s33, 1\ns_cselect_b32 s34, 0, s34\ns_cmp_lg_u32 s34, 0\ns_cbranch_scc1 RTL_{q}\ns_waitcnt vmcnt(0)\ns_branch RTB_{q}")
    def mm(j,ops):
        b=FR+36*(j%NST); per=-(-len(ops)//10)
        for x in range(20):
            nb,tg=x//4,x%4
            g.vwait(max(tk[j,nb],to[j,tg])); a=ACC+4*(nb*4+tg)
            g(f"v_mfma_f32_16x16x32_bf16 {vr(a,4)}, {vr(b+4*nb,4)}, {vr(oreg(j,tg),4)}, {'0' if j==0 else vr(a,4)}")
            if x%2==1 and "noil" not in OPT:
                for _ in range(per):
                    if ops: ops.pop(0)()
        while ops: ops.pop(0)()
    def xres():
        for k in range(2):
            g(f"""v_add_u32 v12, {512*k}, v1
            v_lshrrev_b32 v13, 7, v12
            v_bfe_u32 v14, v12, 5, 2
            v_and_b32 v15, 15, v12
            v_lshl_add_u32 v14, v14, 4, v15
            v_mul_u32_u24 v14, 1280, v14
            v_lshl_add_u32 v14, v13, 5, v14
            v_and_b32 v13, 16, v12
            v_add_u32 v{8+k}, v13, v14""")
            g.vmem(f"buffer_load_dwordx4 {vr(16+4*k,4)}, v{8+k}, s[8:11], 0 offen")
        g(f"""v_lshrrev_b32 v12, 4, v1
        v_lshlrev_b32 v12, 9, v12
        v_lshl_add_u32 v10, v15, 4, v12
        s_mul_i32 s33, s25, {PART}
        v_lshl_add_u32 v11, v0, 4, s33""")
    g(f"s_cmp_ge_u32 s24, 4\ns_cbranch_scc1 {LA}")
    st0=g.state()
    g("""s_and_b32 s33, s22, 7
    s_mul_i32 s33, s33, 3
    s_lshr_b32 s33, s33, 1
    s_and_b32 s34, s23, 3
    s_mul_i32 s34, s34, 3
    s_add_u32 s33, s33, s34
    s_sub_u32 s34, s33, 12
    s_cmp_ge_u32 s33, 12
    s_cselect_b32 s35, s34, s33""")
    if "norot3" in OPT: g("s_mov_b32 s35, 0")
    if "rot2" in OPT: g("s_add_u32 s35, s22, s23\ns_and_b32 s35, s35, 1\ns_mul_i32 s35, s35, 6")
    if "rot4" in OPT: g("s_add_u32 s35, s22, s23\ns_and_b32 s35, s35, 3\ns_mul_i32 s35, s35, 3")
    gaddr("s35")
    g(f"s_add_u32 s36, s16, {48*40960}\ns_add_u32 s37, s17, {12*8192}")
    SPJ=int(os.environ.get("SPJ","0"))
    def loads(j):
        if j<12: return ldh(j)+ldw(j)+[lambda: g("s_cmp_eq_u32 s38, s36\ns_cselect_b32 s38, s16, s38\ns_cselect_b32 s39, s17, s39" if j<11 else "s_mov_b32 s38, s36\ns_mov_b32 s39, s37")]
        o=ldw(j) if j<17 else []
        for q in range(12,17):
            if max(q,SPJ+LKA)==j: o+=ldh(q)
        return o
    g(f"""v_lshrrev_b32 v12, 4, v1
    v_mul_u32_u24 v12, {BS}, v12
    v_and_b32 v13, 15, v1
    v_lshl_add_u32 v12, v13, 4, v12
    v_mov_b32 v16, 0x3f803f80
    v_mov_b32 v17, v16
    v_mov_b32 v18, v16
    v_mov_b32 v19, v16
    v_subrev_u32 v13, 192, v1
    v_mul_u32_u24 v14, {BS}, v13
    v_add_u32 v20, s29, v13
    v_mov_b32 v21, 0x3f80
    v_cmp_gt_i32 vcc, 0, v20
    s_cmp_eq_u32 s24, 3
    s_cbranch_scc1 W3_INIT
    ds_write_b128 v12, v[16:19] offset:{VOFF+2560}
    s_branch W3_DONE
    W3_INIT:
    v_cndmask_b32 v20, 0, v21, vcc
    v_mov_b32 v21, 0
    s_mov_b64 exec, 0xfff
    ds_write_b64 v14, v[20:21] offset:2560
    ds_write_b32 v14, v21 offset:{CNT}
    v_mov_b32 v14, 40960
    ds_write_b32 v14, v21 offset:40960
    s_mov_b64 exec, -1
    W3_DONE:""")
    g.lwait0()
    NPRE=int(os.environ.get("NPRE","0")); VAJ=int(os.environ.get("VAJ","0"))
    g("s_barrier"); stamp(g,1)
    for j in range(LKA):
        for op in loads(j): op()
        if j==VAJ: g("v_mov_b32 v2, 0"); g.vwait(stg[2]); arrive(2,2,3)
    if "ts" in OPT: g("s_mov_b32 s93, 0")
    for j in range(17):
        if j>=12:
            g.vwait(to[j,3]); chk(j); g(f"s_cbranch_vccnz RT_{j}\nRTB_{j}:")
            if j==12: stamp(g,6); rstamp(g,53)
        if j==max(12-LKA,SPJ): stamp(g,5); rstamp(g,54)
        mm(j,loads(j+LKA))
        if j in (0,5): stamp(g,2+j//5)
        if j==13: xres()
        if j==15: g("v_mov_b32 v2, 40960"); spin(3,2,3,4)
    g("s_nop 7")
    stamp(g,7)
    if "ts" in OPT: g("v_writelane_b32 v25, s93, 52")
    for f in range(20): g.ds(f"ds_write_b128 v11, {vr(ACC+4*f,4)} offset:{f*1024}")
    g.vwait0(); g(f"s_branch {LR}")
    for q in range(12,17): retry(q)
    g(f"{LA}:")
    g.restore(st0)
    if "prio" in OPT: g("s_setprio 1")
    g(f"""v_lshrrev_b32 v2, 5, v0
    v_and_b32 v3, 31, v0
    s_lshl_b32 s31, s27, 2
    s_add_u32 s31, s31, s25
    s_mul_i32 s33, s31, {QKV_TB}
    s_add_u32 s33, s33, s30
    v_lshlrev_b32 v4, 3, v3
    v_lshl_add_u32 v5, v2, 9, v4""")
    for hh,q in ((0,16),(1,72)):
        g.vmem(f"buffer_load_dwordx2 {vr(q,2)}, v5, s[72:75], s33 offen offset:{1280*hh}")
        g.vmem(f"buffer_load_dwordx2 {vr(q+2,2)}, v5, s[72:75], s33 offen offset:{1280*hh+256}")
        qtok=g.vmem(f"buffer_load_dwordx2 {vr(q+4,2)}, v4, s[72:75], s33 offen offset:{1280*hh+1024}")
    g("s_barrier")
    g("v_lshlrev_b32 v6, 2, v2\nv_sub_u32 v6, v3, v6\nv_mov_b32 v7, 0xffff\nv_mov_b32 v13, 0xffff0000")
    for r in range(16): g(f"v_cmp_le_i32 s[{40+2*r}:{41+2*r}], {8*(r//4)+r%4}, v6")
    for k in range(8):
        g(f"v_cndmask_b32 v14, 0, v7, s[{40+4*k}:{41+4*k}]\nv_cndmask_b32 v15, 0, v13, s[{42+4*k}:{43+4*k}]\nv_or_b32 v{64+k}, v14, v15")
    g(f"s_mul_i32 s34, s25, {BS}\nv_cmp_lt_u32 vcc, 31, v0")
    KF=[32,40,48]
    def setup(hh):
        g(f"""v_lshrrev_b32 v6, 1, v3
        v_and_b32 v7, 1, v3
        v_lshlrev_b32 v7, 3, v7
        v_add_u32 v7, s34, v7""")
        for (d,expr) in ((10,f"v_lshl_add_u32 v13, v2, 1, {5*hh}"),(11,"v_add_u32 v13, 1, v13"),(12,f"v_mov_b32 v13, {5*hh+4}")):
            g(expr)
            g(f"""v_and_b32 v14, 7, v13
            v_lshlrev_b32 v14, 1, v14
            v_xor_b32 v14, v14, v6
            v_lshl_add_u32 v14, v14, 4, v7
            v_lshl_add_u32 v{d}, v13, 8, v14""")
        g(f"""s_add_u32 s35, s34, 2560
        v_mov_b32 v13, s35
        v_cndmask_b32 v12, v12, v13, vcc""")
        for k in KF: g(f"v_mov_b32 v{k+6}, 0\nv_mov_b32 v{k+7}, 0")
    def setup2(hh):
        return f"""v_bfe_u32 v6, v0, 4, 1
        v_and_b32 v7, 3, v0
        v_lshl_add_u32 v6, v6, 2, v7
        v_add_u32 v7, {5*hh}, v6
        v_and_b32 v4, 7, v7
        v_lshlrev_b32 v4, 1, v4
        v_bfe_u32 v5, v0, 3, 1
        v_lshl_add_u32 v5, v2, 1, v5
        v_xor_b32 v4, v4, v5
        v_lshlrev_b32 v4, 4, v4
        v_bfe_u32 v5, v0, 2, 1
        v_lshl_add_u32 v4, v5, 3, v4
        v_cmp_lt_u32 s[36:37], 4, v6
        v_lshlrev_b32 v7, 8, v7
        v_mov_b32 v5, 2560
        s_add_u32 s35, s34, {VOFF}
        v_cndmask_b32 v7, v7, v5, s[36:37]
        v_add3_u32 v28, v7, v4, s35
        v_xor_b32 v29, 64, v28
        v_xor_b32 v30, 128, v28
        v_xor_b32 v31, 192, v28
        s_mul_i32 s33, s28, 2560
        v_lshlrev_b32 v6, 4, v3
        v_lshl_add_u32 v6, v2, 9, v6
        s_mul_i32 s35, s31, {HO_TB}
        s_add_u32 s33, s33, s35
        s_add_u32 s33, s33, {192*512}
        v_add_u32 v15, s33, v6""".split("\n")
    setup(0)
    g("v_mov_b32 v22, 0\nv_mov_b32 v23, 0\nv_mov_b32 v78, 0\nv_mov_b32 v79, 0\nv_mov_b32 v6, 0xf149\nv_mov_b32 v56, 0x3f803f80\nv_mov_b32 v57, 0\nv_mov_b32 v27, 0\nv_cndmask_b32 v56, v56, v57, vcc")
    g.vwait(stg[2]); arrive(1,22,26); g.vwait(qtok)
    g("v_cndmask_b32 v20, v20, v6, vcc\nv_cndmask_b32 v21, v21, v22, vcc\nv_cndmask_b32 v76, v76, v6, vcc\nv_cndmask_b32 v77, v77, v22, vcc")
    spin(1,22,6,4); stamp(g,1)
    order=[0,8,1,2,3,4,5,6,7]
    def item(hh,Q):
        kt={}
        def kread(i):
            if i>=9: return
            t=order[i]; k=KF[i%3]
            g.ds(f"ds_read_b64 {vr(k,2)}, v10 offset:{t*BS}"); g.ds(f"ds_read_b64 {vr(k+2,2)}, v11 offset:{t*BS}")
            kt[i]=g.ds(f"ds_read_b64 {vr(k+4,2)}, v12 offset:{t*BS}")
        def mx(t,first):
            b=S+16*t; o=[]
            for k in range(0,16,2):
                a=f"v{13+(k//2)%2}"
                if first and k<4: o.append(f"v_max_f32 {a}, v{b+k}, v{b+k+1}")
                else: o.append(f"v_max3_f32 {a}, v{b+k}, v{b+k+1}, {a}")
            return o
        for i in range(3): kread(i)
        s2=setup2(hh)
        for i in range(9):
            t=order[i]; k=KF[i%3]; g.lwait(kt[i])
            g(f"v_mfma_f32_32x32x16_bf16 {vr(S+16*t,16)}, {vr(k,4)}, {vr(Q,4)}, 0")
            g(f"v_mfma_f32_32x32x16_bf16 {vr(S+16*t,16)}, {vr(k+4,4)}, {vr(Q+4,4)}, {vr(S+16*t,16)}")
            kread(i+3)
            if i<3: g("\n".join(s2[11*i:11*i+11]))
            elif i==3:
                for r in range(16): g(f"v_cndmask_b32 v{S+128+r}, v{S+r}, v{S+128+r}, s[{40+2*r}:{41+2*r}]")
                g("\n".join(mx(8,True)))
            else: g("\n".join(mx(order[i-2],False)))
        VF=[32,36,40,44,48,52]; vt={}
        seq=[(t,m) for t in [1,2,3,4,5,6,7,8,0] for m in range(2)]
        def vread(i):
            if i>=18: return
            t,m=seq[i]; r=VF[i%6]
            g.ds(f"ds_read_b64_tr_b16 {vr(r,2)}, v{28+2*m} offset:{t*BS}")
            vt[i]=g.ds(f"ds_read_b64_tr_b16 {vr(r+2,2)}, v{29+2*m} offset:{t*BS}")
        g("\n".join(mx(6,False)))
        if "ts2" in OPT: stamp(g,10+3*hh)
        if hh==0: spin(2,22,6,4)
        for i in range(6): vread(i)
        g("s_nop 4"); g("\n".join(mx(7,False)))
        g("""v_max_f32 v13, v13, v14
        v_mov_b32 v14, v13
        s_nop 1
        v_permlane32_swap_b32 v13, v14
        v_max_f32 v12, v13, v14
        v_cvt_pk_bf16_f32 v13, -v12, -v12
        v_and_b32 v13, 0xffff0000, v13
        v_sub_f32 v13, -v12, v13
        v_cvt_pk_bf16_f32 v26, -v12, v13
        s_nop 1""")
        def sub(t): g(f"v_mfma_f32_32x32x8bf16_1k {vr(S+16*t,16)}, v[56:57], v[26:27], {vr(S+16*t,16)}")
        sub(1); sub(2); g("s_nop 7\ns_nop 3")
        if "ts2" in OPT: stamp(g,11+3*hh)
        def pv(i):
            t,m=seq[i]; g.lwait(vt[i])
            g(f"v_mfma_f32_32x32x16_bf16 {vr(O,16)}, {vr(VF[i%6],4)}, {vr(S+16*t+8*m,4)}, {'0' if i==0 else vr(O,16)}")
            vread(i+6)
        for i in range(16):
            t,m=seq[i]; b=S+16*t+8*m
            for k in range(8):
                g(f"v_exp_f32 v{b+k}, v{b+k}")
                if k==1 and i>0: pv(i-1)
                if k==5 and m==0 and t+2<=8: sub(t+2)
            for k in range(4): g(f"v_cvt_pk_bf16_f32 v{b+k}, v{b+2*k}, v{b+2*k+1}")
            if t==8:
                for k in range(4):
                    b=S+128+8*m+k
                    g(f"v_and_b32 v{b+4}, v{64+4*m+k}, v{b}\nv_xor_b32 v{S+8*m+k}, v{b+4}, v{b}\nv_mov_b32 v{b}, v{b+4}")
        g("s_nop 1")
        if "ts2" in OPT: stamp(g,12+3*hh)
        for i in (15,16,17): pv(i)
        if hh==0: setup(1)
        else: g("s_nop 7\ns_nop 3")
        g(f"v_rcp_f32 v14, v{O+12}\ns_nop 0")
        for gq in range(3):
            r=O+4*gq; d=((58,60,240),(242,244,62))[hh][gq]
            for k in range(4): g(f"v_mul_f32 v{r+k}, v{r+k}, v14")
            g(f"v_cvt_pk_bf16_f32 v{d}, v{r}, v{r+1}\nv_cvt_pk_bf16_f32 v{d+1}, v{r+2}, v{r+3}")
        def sw(a,b): g(f"v_permlane32_swap_b32 v{a}, v{b}\nv_permlane32_swap_b32 v{a+1}, v{b+1}")
        if hh==0:
            sw(58,60); g.vmem("buffer_store_dwordx4 v[58:61], v15, s[76:79], 0 offen sc1",'st')
        else:
            sw(242,244); sw(246,62); sw(240,244)
            g.vmem("buffer_store_dwordx4 v[240:243], v15, s[76:79], 0 offen offset:1024 sc1",'st')
            g("s_mov_b32 exec_lo, 0")
            g.vmem("buffer_store_dwordx4 v[244:247], v15, s[76:79], 0 offen offset:1536 sc1",'st')
            g("s_mov_b32 exec_lo, -1")
        stamp(g,2+hh)
    item(0,16); item(1,72)
    rstamp(g,50); g("v_mov_b32 v7, 40960\ns_setprio 0"); arrive(3,7,6)
    if "ts" in OPT: g.vwait0(); rstamp(g,51)
    stamp(g,5); xres(); g.vwait0()
    g(f"{LR}:")
    g.lwait0(); g("s_barrier"); stamp(g,8)
    g("v_add_u32 v11, 40960, v10")
    def red(k):
        for w in range(4):
            for h in range(2): g(f"ds_read_b128 {vr(32+8*w+4*h,4)}, v{10+w//2} offset:{(w%2)*PART+256*h+16384*k}")
        for w in range(1,4):
            g(f"s_waitcnt lgkmcnt({6-2*w})")
            for q in range(0,8,2): g(f"v_pk_add_f32 {vr(32+q,2)}, {vr(32+q,2)}, {vr(32+8*w+q,2)}")
        for q in range(4):
            x=16+4*k+q
            g(f"v_lshlrev_b32 v28, 16, v{x}\nv_and_b32 v29, 0xffff0000, v{x}\nv_pk_add_f32 {vr(32+2*q,2)}, {vr(32+2*q,2)}, v[28:29]")
            g(f"v_cvt_pk_bf16_f32 v{x}, v{32+2*q}, v{32+2*q+1}")
        g(f"buffer_store_dwordx4 {vr(16+4*k,4)}, v{8+k}, s[12:15], 0 offen{' sc1' if 'osc1' in OPT else ''}")
    red(0)
    g("s_cmp_ge_u32 s24, 2\ns_cbranch_scc1 RED_DONE"); red(1); g("RED_DONE:")
    stamp(g,9); rstamp(g,63); stamp_store(g,1)
```

```python
import sys
from gfw import *
import k1, k23_v4 as k23
N="parallel_sum__sliding_block__glu_gated_bilinear__prompt"
hdr=open(f"cdna_kernels/{N}.s.ref").read().split("; @launch")[0]
ks=[("k1_kernel",k1.k1_body,512,159744),(N+"_kernel",k23.k23_body,512,82048)]
o=[hdr.rstrip("\n")]
for n,f,b,l in ks: o.append(f"; @launch kernel={n} grid=(256,1,1) block=({b},1,1) lds={l}")
o.append('.amdgcn_target "amdgcn-amd-amdhsa--gfx950"\n.text')
for i,(n,f,b,l) in enumerate(ks):
    g=G(); g.lab=1000*i
    g(f"s_cmp_ge_u32 s2, 256\ns_cbranch_scc1 END_{i}"); f(g); g(f"END_{i}:\ns_endpgm")
    o.append(khead(n)); o.append(g.text())
o.append('CODE_END:\n.section .rodata,"a"')
for n,f,b,l in ks: o.append(kdesc(n))
open(sys.argv[1],"w").write("\n".join(o)+"\n")
```

```python
from gfw import *
XR=96; ACC=[48,64,80]; WF=32; NWF=4
NB=9; EX=147456
def k1_body(g, st_mod=""):
    stamp_init(g,29); rstamp(g,62); stamp(g,0); st_mod=STM
    g("""s_load_dwordx4 s[4:7], s[0:1], 0
    s_load_dwordx2 s[8:9], s[0:1], 16
    s_load_dwordx4 s[12:15], s[0:1], 32
    s_load_dwordx2 s[16:17], s[0:1], 48
    s_load_dwordx2 s[18:19], s[0:1], 72""")
    if "shs" in OPT: g("s_load_dwordx2 s[100:101], s[0:1], 64")
    codepf(g,84,"k1_kernel","A")
    g("""v_lshrrev_b32 v1, 6, v0
    v_and_b32 v0, 63, v0
    s_nop 0
    v_readfirstlane_b32 s24, v1
    s_and_b32 s46, s2, 7
    s_lshr_b32 s47, s2, 3
    s_and_b32 s27, s46, 1
    s_lshl_b32 s27, s27, 3
    s_and_b32 s33, s47, 7
    s_add_u32 s27, s27, s33
    s_lshr_b32 s28, s46, 1
    s_lshl_b32 s28, s28, 2
    s_lshr_b32 s33, s47, 3
    s_add_u32 s28, s28, s33
    s_and_b32 s25, s24, 3
    s_lshr_b32 s26, s24, 2
    s_lshl_b32 s30, s24, 10
    s_mov_b32 s45, 0x3f803f80""")
    g("""s_sub_u32 s46, s28, 8
    s_mul_i32 s47, s46, 3
    s_lshl_b32 s33, s28, 1
    s_cmp_ge_u32 s28, 8
    s_cselect_b32 s29, 1, 0
    s_cselect_b32 s34, s47, s33
    s_add_u32 s35, s34, s29
    s_cmp_ge_u32 s28, 6
    s_cselect_b32 s36, 22, 24
    s_add_u32 s36, s36, s28
    s_add_u32 s47, s47, 2
    s_add_u32 s33, s33, 1
    s_add_u32 s46, s46, 16
    s_cmp_ge_u32 s28, 8
    s_cselect_b32 s36, s47, s36
    s_cselect_b32 s37, s46, s33
    s_mov_b32 s46, 3072
    s_mov_b32 s47, 3840
    s_cselect_b32 s32, s47, s46""")
    g("""v_lshrrev_b32 v2, 3, v0
    s_lshl_b32 s33, s24, 3
    v_add_u32 v2, s33, v2
    v_and_b32 v3, 7, v0
    v_bfe_u32 v4, v2, 1, 3
    v_xor_b32 v4, v4, v3
    v_lshlrev_b32 v4, 4, v4
    s_movk_i32 s33, 1280
    v_mad_u32_u24 v8, v2, s33, v4
    v_bfe_u32 v4, v2, 1, 1
    v_lshlrev_b32 v4, 2, v4
    v_xor_b32 v4, v4, v3
    v_lshlrev_b32 v4, 4, v4
    v_mad_u32_u24 v9, v2, s32, v4
    s_mul_i32 s33, s27, 163840
    s_mul_i32 s38, s32, 639
    s_add_u32 s38, s38, 128
    s_lshl_b32 s32, s32, 6
    s_lshl_b32 s46, s34, 7
    s_lshl_b32 s47, s35, 7
    s_waitcnt lgkmcnt(0)""")
    stamp(g,2); srd(g,48,"s4","s5","s33",163840)
    g("""s_cmp_eq_u32 s29, 1
    s_cselect_b32 s52, s6, s12
    s_cselect_b32 s53, s7, s13
    s_cselect_b32 s56, s6, s14
    s_cselect_b32 s57, s7, s15""")
    srd(g,52,"s52","s53","s46","s38")
    srd(g,56,"s56","s57","s47","s38")
    g("""s_and_b32 s20, s28, 3
    s_mul_i32 s20, s20, 5
    s_lshr_b32 s20, s20, 1
    s_and_b32 s21, s27, 7
    s_add_u32 s20, s20, s21
    s_sub_u32 s21, s20, 10
    s_cmp_ge_u32 s20, 10
    s_cselect_b32 s20, s21, s20""")
    if "norot" in OPT: g("s_mov_b32 s20, 0")
    if "rotc" in OPT: g("s_add_u32 s20, s27, s28\ns_and_b32 s20, s20, 1\ns_mul_i32 s20, s20, 5")
    if "rotd" in OPT: g("s_add_u32 s20, s27, s28\ns_and_b32 s20, s20, 3\ns_mul_i32 s20, s20, 5\ns_lshr_b32 s20, s20, 1")
    if "rote" in OPT: g("s_add_u32 s20, s27, s28\ns_and_b32 s20, s20, 1")
    if "rotf" in OPT: g("s_add_u32 s20, s27, s28\ns_and_b32 s20, s20, 3")
    g("""s_mul_i32 s31, s20, s32
    s_mul_i32 s23, s32, 10
    s_mul_i32 s21, s20, %d
    s_mul_i32 s22, s20, %d
    s_lshl_b32 s20, s20, 7"""%(64*3840,64*3072))
    def adv(r,step,lim): g(f"s_add_u32 {r}, {r}, {step}\ns_cmp_eq_u32 {r}, {lim}\ns_cselect_b32 {r}, 0, {r}")
    items=[]
    for s in range(10): items+= [("x",s),("w0",s)]
    for s in range(5): items.append(("w1",s))
    for s in range(10): items.append(("w2",s))
    tok={}
    def issue(it):
        if it>=len(items): return
        kind,j=items[it]; base=(it%NB)*16384
        for t in range(2):
            g(f"s_add_u32 m0, s30, {base+t*8192}")
            if kind=="x":
                g(f"s_add_u32 s33, s20, {t*64*1280}"); a=("v8",48,"s33")
            elif kind=="w0":
                g("s_nop 0"); a=("v9",52+4*t,"s31")
            elif kind=="w1":
                g("s_nop 0"); a=("v8",60,"s21")
            else:
                g("s_nop 0"); a=("v9",64+4*t,"s22")
            tok[it]=g.vmem(f"buffer_load_dwordx4 {a[0]}, s[{a[1]}:{a[1]+3}], {a[2]} offen{' nt' if ('ntx' in OPT and kind=='x') or ('ntw' in OPT and kind!='x') else ''} lds")
            if kind=="w1": adv("s21",64*3840,640*3840)
        if kind=="x": adv("s20",128,1280)
        if kind=="w0": adv("s31","s32","s23")
        if kind=="w2": adv("s22",64*3072,640*3072)
        if it==19:
            g("""v_lshrrev_b32 v8, 3, v0
            s_lshl_b32 s33, s24, 3
            v_add_u32 v8, s33, v8
            v_bfe_u32 v30, v8, 1, 1
            v_lshlrev_b32 v30, 2, v30
            v_and_b32 v9, 7, v0
            v_xor_b32 v30, v30, v9
            v_lshlrev_b32 v30, 4, v30
            v_mul_u32_u24 v9, 3072, v8
            v_mul_u32_u24 v8, 3840, v8
            v_add_u32 v9, v9, v30
            v_add_u32 v8, v8, v30""")
    NI=int(os.environ.get("NI","4")); GP=int(os.environ.get("GP","-1"))
    def gpf():
        g(f"s_mov_b64 s[88:89], s[4:5]\ns_mov_b32 s90, {2048*1280}\ns_mov_b32 s91, 0x20000\ns_movk_i32 s92, 40")
        for w,p,sz,n in ((2,6,640*3840,38),(4,12,640*3072,60),(5,14,640*3072,60),(6,16,1536*1280,60),(7,8,640*1280,25)):
            g(f"s_cmp_ge_u32 s24, {w}\ns_cselect_b64 s[88:89], s[{p}:{p+1}], s[88:89]\ns_cselect_b32 s90, {sz}, s90\ns_cselect_b32 s92, {n}, s92")
        g("""s_lshl_b32 s46, s2, 1
        s_and_b32 s47, s24, 1
        s_add_u32 s46, s46, s47
        s_cmp_ge_u32 s24, 4
        s_cselect_b32 s46, s2, s46
        s_mul_i32 s46, s46, s92
        v_add_lshl_u32 v253, v0, s46, 7
        v_cmp_gt_u32 vcc, s92, v0
        s_mov_b64 exec, vcc""")
        g.vmem("buffer_load_dword v252, v253, s[88:91], 0 offen"); g("s_mov_b64 exec, -1")
    for it in range(NI):
        if it==GP: gpf()
        if "pr1" in OPT and it%2==0: g(f"s_setprio {max(3-it//2,0)}")
        issue(it)
        if "pr1" in OPT and it==NI-1: g("s_setprio 0")
        if it%2==1 and it<NI-1 and "ib" in OPT: g("s_barrier")
    if GP==NI: gpf()
    g("s_cmp_eq_u32 s26, 0\ns_cselect_b64 vcc, 0, -1")
    g("s_lshl_b32 s46, s36, 7"); srd(g,60,"s6","s7","s46",639*3840+128)
    g("s_lshl_b32 s46, s37, 7"); srd(g,64,"s12","s13","s46",639*3072+128); srd(g,68,"s14","s15","s46",639*3072+128)
    if "pf" in OPT:
        g("s_mov_b64 s[88:89], s[48:49]\ns_mov_b64 s[90:91], s[50:51]\ns_movk_i32 s92, 128\ns_lshr_b32 s93, s32, 6")
        for w,(sd,p) in enumerate(((52,"s93"),(56,"s93"),(60,"3840"),(64,"3072"),(68,"3072"))):
            g(f"s_cmp_eq_u32 s24, {w}\ns_cselect_b64 s[88:89], s[{sd}:{sd+1}], s[88:89]\ns_cselect_b64 s[90:91], s[{sd+2}:{sd+3}], s[90:91]\ns_cselect_b32 s92, {p}, s92")
        g("""s_and_b32 s46, s27, 7
        s_mul_i32 s46, s46, 80
        s_and_b32 s47, s28, 3
        s_mul_i32 s47, s47, 320
        s_mul_i32 s33, s24, 107
        s_add_u32 s47, s47, s33
        s_sub_u32 s47, s47, 535
        s_cmp_lt_u32 s24, 5
        s_cselect_b32 s46, s46, s47
        s_movk_i32 s47, 106
        s_cselect_b32 s47, 79, s47
        v_add_u32 v12, 64, v0
        v_min_u32 v12, s47, v12
        v_add_u32 v13, s46, v0
        v_add_u32 v12, s46, v12
        v_mul_u32_u24 v13, s92, v13
        v_mul_u32_u24 v12, s92, v12""")
        g.vmem("buffer_load_dword v20, v13, s[88:91], 0 offen"); g.vmem("buffer_load_dword v21, v12, s[88:91], 0 offen")
    g("s_lshr_b32 s46, s28, 1\ns_cmp_eq_u32 s46, 3\ns_cselect_b64 s[96:97], 0, -1")
    srd(g,72,"s18","s19",None,64*QKV_TB)
    srd(g,76,"s18","s19",HO_OFF,64*HO_TB)
    g(f"""s_lshl_b32 s38, s34, 12
    s_lshl_b32 s39, s35, 12
    s_lshl_b32 s40, s36, 12
    s_lshl_b32 s41, s37, 12
    s_mov_b32 s46, {f32(QSCALE)}
    s_cmp_lt_u32 s34, 10
    s_cselect_b32 s42, s46, 1.0
    s_cmp_lt_u32 s35, 10
    s_cselect_b32 s43, s46, 1.0
    s_cmp_lt_u32 s36, 10
    s_cselect_b32 s44, s46, 1.0""")
    g("""v_lshrrev_b32 v12, 5, v0
    v_bfe_u32 v13, v0, 2, 2
    v_lshl_add_u32 v1, v12, 3, v13
    v_lshlrev_b32 v1, 7, v1
    v_lshrrev_b32 v13, 1, v13
    v_xor_b32 v13, s26, v13
    v_lshl_add_u32 v1, v13, 6, v1
    v_bfe_u32 v13, v0, 4, 1
    v_lshl_add_u32 v1, v13, 5, v1
    v_and_b32 v13, 3, v0
    v_lshl_add_u32 v1, v13, 3, v1
    s_lshl_b32 s46, s26, 1
    s_xor_b32 s93, s46, s25
    s_lshl_b32 s46, s93, 11
    v_add_u32 v1, s46, v1
    v_xor_b32 v2, 0x800, v1
    v_xor_b32 v3, 0x1000, v1
    v_xor_b32 v25, 0x1800, v1""")
    g("""v_and_b32 v31, 31, v0
    v_bfe_u32 v13, v0, 1, 3
    v_xor_b32 v13, v13, v12
    v_lshlrev_b32 v13, 4, v13
    s_lshl_b32 s46, s25, 12
    v_lshl_add_u32 v4, v31, 7, v13
    v_add_u32 v4, s46, v4
    s_lshl_b32 s46, s93, 5
    v_xor_b32 v4, s46, v4
    v_xor_b32 v5, 32, v4
    v_xor_b32 v6, 64, v4
    v_xor_b32 v7, 96, v4""")
    g(f"""s_lshl_b32 s46, s27, 2
    s_add_u32 s46, s46, s25
    s_mul_i32 s47, s46, {QKV_TB}
    s_lshl_b32 s33, s26, 11
    s_add_u32 s47, s47, s33
    v_lshlrev_b32 v26, 3, v31
    v_lshl_add_u32 v26, v12, 8, v26
    v_add_u32 v26, s47, v26
    s_mul_i32 s47, s46, {HO_TB}
    s_add_u32 s47, s47, s33
    v_lshlrev_b32 v27, 4, v31
    v_lshl_add_u32 v27, v12, 9, v27
    v_add_u32 v27, s47, v27
    v_mov_b32 v10, 0
    v_mov_b32 v11, 0
    v_lshrrev_b32 v16, 4, v0
    v_xor_b32 v16, v16, v0
    v_and_b32 v16, 1, v16
    v_subrev_u32 v16, 1, v16
    v_and_b32 v16, s45, v16
    v_mov_b32 v17, v16
    v_mov_b32 v18, v16
    v_mov_b32 v19, v16
""")
    g("""s_mov_b32 s45, 0x3f803f80
    s_mov_b32 s93, 0xffff0000
    s_lshl_b32 s46, s24, 8
    s_add_u32 s46, s46, s2
    s_mul_i32 s47, s46, 6554
    s_lshr_b32 s47, s47, 16
    s_mul_i32 s33, s47, 10
    s_sub_u32 s33, s46, s33
    s_mul_i32 s88, s47, 40
    s_lshl_b32 s89, s33, 2
    s_add_u32 s88, s88, s89
    s_lshl_b32 s88, s88, 10
    s_lshl_b32 s33, s33, 7
    s_sub_u32 s89, s47, 48
    s_cmp_ge_u32 s47, 48
    s_cselect_b32 s47, s89, s47
    s_cselect_b32 s80, s8, s16
    s_cselect_b32 s81, s9, s17
    s_cselect_b32 s90, 8, 4
    s_cselect_b32 s91, 4, 8
    s_lshl_b32 s91, s91, 7
    s_mul_i32 s47, s47, 40960
    s_add_u32 s47, s47, s33
    s_add_u32 s80, s80, s47
    s_addc_u32 s81, s81, 0
    s_mov_b32 s82, %d
    s_mov_b32 s83, 0x20000
    s_mov_b32 s89, s46
    s_lshl_b32 s33, s24, 12
    s_add_u32 s92, s33, %d
    s_lshl_b32 s46, s26, 10
    s_add_u32 s46, s46, %d
    v_and_b32 v31, 31, v0
    v_lshl_add_u32 v31, v31, 4, s46
    s_lshl_b32 s3, s25, 2
    s_add_u32 s3, s3, s46
    s_lshl_b32 s10, s25, 10
    s_add_u32 s10, s10, %d
    s_lshl_b32 s11, s26, 9"""%(31*1280+128,(35%NB)*16384,EX,EX+6144))
    srd(g,84,"s18","s19",W2_OFF,0x480000 if "shs" in OPT else 68*40*1024)
    if "shs" in OPT: g("""s_lshr_b32 s46, s28, 2
    s_lshl_b32 s47, s27, 2
    s_add_u32 s46, s46, s47
    s_lshl_b32 s98, s46, 13
    s_lshl_b32 s46, s46, 2
    v_mov_b32 v28, s46
    s_lshl_b32 s47, s25, 11
    s_add_u32 s98, s98, s47
    s_add_u32 s98, s98, 0x400000
    s_and_b32 s47, s28, 3
    v_add_u32 v82, s47, v28
    s_lshl_b32 s47, s47, 1
    s_add_u32 s47, s47, s26
    s_lshl_b32 s47, s47, 8
    s_add_u32 s99, s98, s47
    v_lshlrev_b32 v24, 2, v0
    v_mov_b32 v80, 1""")
    CS={0:20,1:12,2:20}
    WA=[1,2,3,25]; wbase=[0,0,0,0]
    def info(n):
        if n<80: return (n//8,(n%8)//2,n%2,4*(n//8)+(n%8)//2,n%2,n<2)
        if n<120:
            m=n-80; return (n//8,m%4,(m%8)//4,m,2,m==0)
        m=n-120; return (n//8,(m%8)//2,m%2,4*(m//8)+(m%8)//2,m%2,m<2)
    def isd(n):
        p=n%8
        return 0 if p==0 else (1 if p==(4 if 80<=n<120 else 5) else None)
    freg={}; cnt=0
    for n in range(200):
        freg[n]=WF+4*(cnt%NWF); cnt+=1
    def step_items(s): return [2*s,2*s+1] if s<10 else [10+s]
    ftok={}; xtok={}; nxt=[NI]; prebar=[]
    def w2dma():
        LS=g.label("K1S")
        g(f"s_cmp_ge_u32 s89, 680\ns_cbranch_scc1 {LS}")
        for t in range(4):
            g(f"s_add_u32 m0, s92, {t*1024}\ns_mov_b32 s33, {t*8*1280}")
            g.vmem("buffer_load_dwordx4 v4, s[80:83], s33 offen lds",'maybe')
        g(f"{LS}:")
    BM=int(os.environ.get("BM","3")); pend=[]
    def burst(lst,br,keep):
        if not lst: return
        L=g.label("K1B"); st=g.state(); tk0=dict(tok)
        g(f"{br} {L}")
        for it in lst:
            if it==35: w2dma()
            else: issue(it)
        g(f"{L}:")
        if not keep: g.vm=st[0]; tok.clear(); tok.update(tk0)
    def reads(n):
        if n>200: return
        if n%8==0:
            s=n//8
            if "pp" in OPT: burst(pend,"s_cbranch_vccz",True); pend.clear()
            if n==200: return
            while prebar: g.lwait(prebar.pop())
            if "early" in OPT: g.lwait0()
            g.vwait(tok[step_items(s)[-1]])
            g("s_barrier")
            if s in (0,10,15,20): stamp(g,1+s//5)
            if "pp" in OPT:
                allowed=NB+sum(len(step_items(q)) for q in range(s if "early" in OPT else s-1))
                while nxt[0]<allowed and nxt[0]<=35 and len(pend)<BM: pend.append(nxt[0]); nxt[0]+=1
                burst(pend,"s_cbranch_vccnz",False)
        s,i,sub,ks,a,first=info(n)
        if n<80 and n%2==0:
            base=((2*s)%NB)*16384
            if base<65536: xtok[ks]=g.ds(f"ds_read_b128 {vr(XR+4*ks,4)}, v{4+i} offset:{base}")
            else:
                g(f"v_add_u32 v30, {base}, v{4+i}"); xtok[ks]=g.ds(f"ds_read_b128 {vr(XR+4*ks,4)}, v30")
        off=(step_items(s)[-1]%NB)*16384
        if not (0<=off-wbase[i]<=49152):
            g(f"v_add_u32 v{WA[i]}, {(off-wbase[i])&0xffffffff}, v{WA[i]}"); wbase[i]=off
        off=off-wbase[i]+sub*8192; r=freg[n]
        g.ds(f"ds_read_b64_tr_b16 {vr(r,2)}, v{WA[i]} offset:{off}")
        ftok[n]=g.ds(f"ds_read_b64_tr_b16 {vr(r+2,2)}, v{WA[i]} offset:{off+512}")
        allowed=NB+sum(len(step_items(q)) for q in range(s if 'early' in OPT else s-1))
        if 'pp' not in OPT and n%2==1 and nxt[0]<allowed and nxt[0]<=35:
            if nxt[0]==35: w2dma()
            else: issue(nxt[0])
            nxt[0]+=1
    def cs_put(a):
        def f():
            g("v_and_b32 v30, 0x31, v0\nv_mul_u32_u24 v30, 0x104, v30\nv_and_b32 v30, 0x1c0, v30\nv_add_u32 v30, s3, v30\ns_nop 4") if a!=1 else None
            for j in range(4): prebar.append(g.ds(f"ds_write_b32 v30, v{CS[a]+j} offset:{a*2048+16*j}"))
        return [("f",f)]
    tk={}
    def corr(a,T):
        return [("f",lambda: tk.__setitem__(a,g.ds(f"ds_read_b128 {vr(T,4)}, v31 offset:{a*2048}"))),None,None,None,None,None,None,
                ("f",lambda: g.lwait(tk[a])),f"v_add_f32 v{T}, v{T}, v{T+1}",f"v_add_f32 v{T+2}, v{T+2}, v{T+3}",f"v_add_f32 v{T}, v{T}, v{T+2}",
                f"v_cvt_pk_bf16_f32 v{T+2}, v{T}, v{T}",f"v_and_b32 v{T+2}, s93, v{T+2}",f"v_sub_f32 v{T+3}, v{T}, v{T+2}",
                f"v_cvt_pk_bf16_f32 v{T+2}, v{T}, v{T+3}\nv_cvt_pk_bf16_f32 v{T+3}, v{T}, v{T+3}\ns_nop 1\n"
                f"v_mfma_f32_32x32x8bf16_1k {vr(ACC[a],16)}, {vr(T+2,2)}, v[10:11], {vr(ACC[a],16)}"]
    st_put=[("f",lambda: (g("v_lshl_add_u32 v30, v0, 3, s10\nv_add_u32 v30, s11, v30"),prebar.append(g.ds("ds_write_b64 v30, v[10:11]"))))]
    stats=[("f",lambda: (g("v_lshl_add_u32 v30, v0, 3, s10\nv_add_u32 v30, s11, v30\nv_xor_b32 v30, 512, v30"),tk.__setitem__('s',g.ds("ds_read_b64 v[4:5], v30")))),
           None,None,None,None,None,None,("f",lambda: g.lwait(tk['s'])),
           "v_add_f32 v14, v10, v4","v_add_f32 v15, v11, v5",
           "v_mov_b32 v4, v14","v_mov_b32 v5, v15","s_nop 1\nv_permlane32_swap_b32 v14, v4\nv_permlane32_swap_b32 v15, v5",
           "v_add_f32 v14, v14, v4","v_add_f32 v15, v15, v5",f"v_mul_f32 v14, {f32(-1/640)}, v14",f"v_mul_f32 v15, {f32(1/640)}, v15",
           "v_fma_f32 v15, -v14, v14, v15","v_max_f32 v15, 0, v15","v_mul_f32 v14, 0.5, v14",f"v_add_f32 v15, {f32(1e-5)}, v15","v_rsq_f32 v24, v15",
           "v_cvt_pk_bf16_f32 v10, v14, v14","v_and_b32 v4, s93, v10","v_sub_f32 v4, v14, v4","v_cvt_pk_bf16_f32 v11, v4, v4",
           "v_mul_f32 v28, v24, v24"]
    def epi_qkv(a,ssc,sso,T=14):
        A=ACC[a]; o=[f"v_mul_f32 v{T}, {ssc}, v24"]; m0,m1=("s_mov_b64 exec, s[96:97]\n","\ns_mov_b64 exec, -1") if a==2 else ("","")
        for gq in range(4):
            r=A+4*gq
            o+=[f"v_mul_f32 v{r+k}, v{r+k}, v{T}" for k in range(4)]
            o+=[f"v_cvt_pk_bf16_f32 v{r}, v{r}, v{r+1}",f"v_cvt_pk_bf16_f32 v{r+1}, v{r+2}, v{r+3}",
                ("st",m0+f"buffer_store_dwordx2 {vr(r,2)}, v26, s[72:75], {sso} offen offset:{gq*512}{' sc1' if 'qsc1' in OPT else ''}"+m1)]
        return o
    def epi_ffn(sso,pk=False):
        A,B=ACC[0],ACC[1]; o=[]
        for h in range(2):
            r=A+8*h; q=B+8*h
            if pk:
                for k in range(0,8,2): o.append(f"v_pk_mul_f32 {vr(r+k,2)}, {vr(r+k,2)}, {vr(q+k,2)}")
                for k in range(0,8,2): o.append(f"v_pk_mul_f32 {vr(r+k,2)}, {vr(r+k,2)}, v[28:29] op_sel:[0,0] op_sel_hi:[1,0]")
            else:
                for k in range(8): o.append(f"v_mul_f32 v{r+k}, v{r+k}, v{q+k}")
                for k in range(8): o.append(f"v_mul_f32 v{r+k}, v{r+k}, v28")
            for k in range(4): o.append(f"v_cvt_pk_bf16_f32 v{r+k}, v{r+2*k}, v{r+2*k+1}")
            o.append(("st",f"buffer_store_dwordx4 {vr(r,4)}, v27, s[76:79], {sso} offen offset:{h*1024}{' sc1' if ('hsc1' in OPT and not pk) or ('hsc2' in OPT and pk) else ''}"))
        return o
    GAP=[None]*8; csq=[]
    def emit_side(op):
        if op is None: return
        if isinstance(op,tuple):
            if op[0]=="st": g.vmem(op[1],'st')
            else: op[1]()
        else: g(op)
    def run(n0,n1,sched,per):
        side=[]
        for n in range(n0,n1):
            side+=sched.get(n,[])
            s,i,sub,ks,a,first=info(n)
            if n<80: g.lwait(xtok[ks])
            g.lwait(ftok[n]); r=freg[n]
            if "ab16" in OPT:
                q=ACC[a]+8*(ks%2)
                g(f"v_mfma_f32_16x16x32_bf16 {vr(q,4)}, {vr(r,4)}, {vr(XR+4*ks,4)}, {vr(q,4)}")
                g(f"v_mfma_f32_16x16x32_bf16 {vr(q+4,4)}, {vr(r,4)}, {vr(XR+4*(ks&~1),4)}, {vr(q+4,4)}")
            else: g(f"v_mfma_f32_32x32x16_bf16 {vr(ACC[a],16)}, {vr(r,4)}, {vr(XR+4*ks,4)}, {'0' if first else vr(ACC[a],16)}")
            if isd(n) is not None and "nocs" not in OPT:
                c=vr(CS[a],4); f0 = n in (0,5,80,120,125)
                g(f"v_mfma_f32_16x16x32_bf16 {c}, {vr(r,4)}, v[16:19], {'0' if f0 else c}")
            if n<80 and n%8==2 and "vst" in OPT:
                for k in range(8):
                    x=XR+16*s+k
                    side+=[f"v_lshlrev_b32 v24, 16, v{x}\nv_and_b32 v28, s93, v{x}\nv_fmac_f32 v11, v24, v24\nv_add_f32 v10, v10, v24",
                           f"v_fmac_f32 v11, v28, v28\nv_add_f32 v10, v10, v28"]
            elif n<80 and "shs" in OPT:
                if n in (4,12,20):
                    if n==20: g("s_bitcmp1_b32 s28, 0\ns_cbranch_scc0 K1SH_SK")
                    for k in range(8): g(f"v_dot2c_f32_bf16 v10, s45, v{XR+16*s+k}\nv_dot2c_f32_bf16 v11, v{XR+16*s+k}, v{XR+16*s+k}")
                    if n==20: g("K1SH_SK:")
            elif n<80 and "stg" in OPT:
                PA,PB=[int(c) for c in os.environ.get("STG","37")]
                if n%8 in (PA,PB):
                    L=g.label("K1T"); g(f"s_cbranch_vcc{'nz' if n%8==PA else 'z'} {L}")
                    for k in range(8): g(f"v_dot2c_f32_bf16 v10, s45, v{XR+16*s+k}\nv_dot2c_f32_bf16 v11, v{XR+16*s+k}, v{XR+16*s+k}")
                    g(f"{L}:")
            elif n<80 and "spr" in OPT:
                P=[int(c) for c in os.environ.get("SPR","3467")]
                if n%8 in P:
                    q=P.index(n%8); m=8//len(P)
                    for k in range(m*q,m*q+m): g(f"v_dot2c_f32_bf16 v10, s45, v{XR+16*s+k}\nv_dot2c_f32_bf16 v11, v{XR+16*s+k}, v{XR+16*s+k}")
            elif n<80 and n%8==4 and "nost" not in OPT and "vst" not in OPT:
                for k in range(8):
                    x=XR+16*s+k
                    g(f"v_dot2c_f32_bf16 v10, s45, v{x}\nv_dot2c_f32_bf16 v11, v{x}, v{x}")
            reads(n+NWF)
            for _ in range(per):
                if side: emit_side(side.pop(0))
        assert not side, len(side)
    if "k1p" in OPT: g("s_cmp_eq_u32 s26, 0\ns_cbranch_scc1 K1P_SK\ns_setprio 1\nK1P_SK:")
    if "k1q" in OPT: g("s_cmp_eq_u32 s26, 1\ns_cbranch_scc1 K1P_SK\ns_setprio 1\nK1P_SK:")
    for n in range(NWF): reads(n)
    sch0={79:cs_put(0)+cs_put(1)+st_put}
    if "shs" in OPT:
        NA,NP,NC,NR=[int(c) for c in os.environ.get("SHS","36,52,59,72").split(",")]
        assert NA%8==4 and NC%8==3
        W0="s_cmp_lg_u32 s24, 0\ns_cbranch_scc1 %s\ns_mov_b64 exec, 1\n%s\ns_mov_b64 exec, -1\n%s:"
        def sh_at(): g.vmem(W0%("K1SH_A","global_store_byte v82, v80, s[100:101] sc1","K1SH_A"),'maybe')
        def sh_po(): tk['sp']=g.vmem(W0%("K1SH_P","global_load_dword v81, v28, s[100:101] sc1","K1SH_P"),'maybe')
        def sh_ck():
            nn=sum(1 for k in g.vm[tk['sp']+1:] if k in ('ld','st'))
            g(f"s_cmp_lg_u32 s24, 0\ns_cbranch_scc1 K1SH_BACK\ns_waitcnt vmcnt({nn})\nv_readfirstlane_b32 s33, v81\ns_cmp_eq_u32 s33, 0x1010101\ns_cbranch_scc0 K1SH_SLOW\nK1SH_BACK:")
        def sh_ld(k): tk['sd']=g.vmem(f"buffer_load_dword v{80+k}, v24, s[84:87], s98 offen offset:{256*k} sc1")
        sch0={21:["s_nop 2\nv_permlane32_swap_b32 v10, v11","v_add_f32 v10, v10, v11",
                  ("f",lambda: tk.__setitem__('ss',g.vmem("buffer_store_dword v10, v24, s[84:87], s99 offen sc1")))],
              NA-1:[("f",lambda: g.vwait(tk['ss']))],NA:[("f",sh_at)],NP:[("f",sh_po)],NC:[("f",sh_ck)],NC+1:[("f",lambda k=k: sh_ld(k)) for k in range(8)],
              NR:[("f",lambda: g.vwait(tk['sd'])),"v_add_f32 v80, v80, v81","v_add_f32 v82, v82, v83","v_add_f32 v84, v84, v85","v_add_f32 v86, v86, v87",
                  "v_add_f32 v80, v80, v82","v_add_f32 v84, v84, v86","v_add_f32 v10, v80, v84"],
              79:cs_put(0)+cs_put(1)}
        i0=stats.index("v_add_f32 v15, v15, v5")
        stats=["v_mov_b32 v14, v10","v_mov_b32 v15, v10","s_nop 1\nv_permlane32_swap_b32 v14, v15"]+stats[i0+1:]
    run(0,80,sch0,4 if 'vst' in OPT else 3); assert not csq
    LY=g.label("K1Y"); LJ=g.label("K1J")
    g(f"s_cmp_eq_u32 s29, 1\ns_cbranch_scc1 {LY}")
    st=g.state(); sv=(dict(ftok),list(nxt),list(wbase),list(prebar),list(pend))
    run(80,120,{85:stats+corr(0,4)+corr(1,4)+GAP+epi_ffn("s38"),119:cs_put(2)},4); assert not csq
    g(f"s_branch {LJ}\n{LY}:")
    endX=g.state()
    g.restore(st); ftok.update(sv[0]); nxt[0]=sv[1][0]; wbase[:]=sv[2]; prebar[:]=sv[3]; pend[:]=sv[4]
    run(80,120,{85:stats+corr(0,4)+corr(1,4)+GAP+epi_qkv(0,"s42","s38")+epi_qkv(1,"s43","s39"),119:cs_put(2)},4); assert not csq
    g(f"{LJ}:")
    assert [k for k in endX[0] if k=='ld']==[k for k in g.vm if k=='ld'] and endX[1]==g.lg
    g.lg_done=min(g.lg_done,endX[3]); g.lwait0(); g.vm=['maybe' if k=='st' else k for k in g.vm]
    w2v=["v_lshrrev_b32 v4, 3, v0","v_and_b32 v5, 7, v0","v_lshlrev_b32 v5, 4, v5","v_mul_u32_u24 v4, 1280, v4","v_add_u32 v4, v4, v5",
        "v_lshrrev_b32 v5, 5, v0","v_bfe_u32 v6, v0, 4, 1","v_mul_u32_u24 v6, s90, v6","v_lshl_add_u32 v5, v5, 4, v6","v_bfe_u32 v6, v0, 2, 2",
        "v_add_u32 v5, v5, v6","v_lshlrev_b32 v5, 7, v5","v_and_b32 v6, 3, v0","v_lshl_add_u32 v5, v6, 3, v5",
        "v_add_u32 v5, s92, v5","v_add_u32 v6, s91, v5","v_lshlrev_b32 v7, 4, v0"]
    c0=corr(0,XR); c1=corr(1,XR+4)
    sm=" sc1" if "ssc1" in OPT else ""
    sent=[f"v_mov_b32 v{XR+8+k}, -1" for k in range(4)]+[f"""s_lshr_b32 s33, s2, 2
    s_mul_i32 s33, s33, {HO_TB}
    s_and_b32 s46, s2, 3
    s_mul_i32 s46, s46, 10240
    s_add_u32 s33, s33, s46
    s_add_u32 s33, s33, {192*512}
    s_add_u32 s46, s33, s30
    v_lshl_add_u32 v{XR+12}, v0, 4, s46
    s_lshr_b32 s46, s30, 2
    s_add_u32 s33, s33, s46
    s_add_u32 s33, s33, 8192
    v_lshl_add_u32 v{XR+13}, v0, 2, s33""",("st",f"buffer_store_dwordx4 {vr(XR+8,4)}, v{XR+12}, s[76:79], 0 offen{sm}"),
    ("st",f"buffer_store_dword v{XR+8}, v{XR+13}, s[76:79], 0 offen{sm}")]
    W2N=int(os.environ.get("W2N","190"))
    def w2rep():
        LS=g.label("K1S")
        g(f"s_cmp_ge_u32 s89, 680\ns_cbranch_scc1 {LS}")
        g("s_waitcnt vmcnt(0)")
        for nb in range(4):
            g(f"ds_read_b64_tr_b16 {vr(XR+16+4*nb,2)}, v5 offset:{nb*32}\nds_read_b64_tr_b16 {vr(XR+18+4*nb,2)}, v6 offset:{nb*32}")
        g("s_waitcnt lgkmcnt(0)")
        for nb in range(4): g(f"buffer_store_dwordx4 {vr(XR+16+4*nb,4)}, v7, s[84:87], s88 offen offset:{nb*1024}{' sc1' if 'wsc1' in OPT else ''}")
        g(f"{LS}:")
    SN=int(os.environ.get("SN","150"))
    run(120,200,{120:w2v,126:corr(2,XR)+GAP+epi_qkv(2,"s44","s40",XR),SN:sent,W2N:[("f",w2rep)],198:cs_put(0)+cs_put(1)},3)
    stamp(g,6)
    g.lwait0(); g("s_barrier")
    for op in [c0[0],c1[0]]+c0[1:]+c1[1:]: emit_side(op)
    if W2N>=200: w2rep()
    g("s_nop 7\ns_nop 7")
    for op in epi_ffn("s41",True): emit_side(op)
    stamp(g,7)
    if "ts" in OPT: g("s_waitcnt vmcnt(0)")
    stamp(g,8); rstamp(g,63); stamp_store(g,0)
    if "shs" in OPT: g(f"""s_endpgm
    K1SH_SLOW:
    s_mov_b32 s46, 0x20000
    K1SH_L:
    global_load_dword v81, v28, s[100:101] sc1
    s_sub_u32 s46, s46, 1
    s_cbranch_scc1 K1SH_X
    s_waitcnt vmcnt(0)
    v_readfirstlane_b32 s33, v81
    s_cmp_eq_u32 s33, 0x1010101
    s_cbranch_scc0 K1SH_L
    K1SH_X:
    s_waitcnt vmcnt(0)
    {"s_sub_u32 s46, 0x20000, s46" if "ts" in OPT else ""}
    {"v_writelane_b32 v29, s46, 52" if "ts" in OPT else ""}
    s_branch K1SH_BACK""")
```

```python
from gfw import *
S=96; O=80; VOFF=36864; BS=3072
ACC=176; NST=4; FR=32; CNT=2560+64; PART=20480
AMAP="s_and_b32 s28, s47, 1\ns_lshl_b32 s46, s46, 1\ns_add_u32 s28, s28, s46\ns_lshr_b32 s27, s47, 1"
def k23_body(g):
    stamp_init(g,25); rstamp(g,62); stamp(g,0)
    g(f"""s_load_dwordx2 s[18:19], s[0:1], 72
    s_load_dwordx2 s[4:5], s[0:1], 0
    s_load_dwordx2 s[20:21], s[0:1], 56""")
    codepf(g,88,"parallel_sum__sliding_block__glu_gated_bilinear__prompt_kernel","B")
    g(f"""v_mov_b32 v1, v0
    v_lshrrev_b32 v2, 6, v0
    v_and_b32 v0, 63, v0
    v_readfirstlane_b32 s24, v2
    s_and_b32 s46, s2, 7
    s_lshr_b32 s47, s2, 3
    s_lshr_b32 s27, s46, 1
    s_lshl_b32 s27, s27, 2
    s_and_b32 s33, s47, 3
    s_add_u32 s27, s27, s33
    s_and_b32 s28, s46, 1
    s_lshl_b32 s28, s28, 3
    s_lshr_b32 s33, s47, 2
    s_add_u32 s28, s28, s33
    s_lshr_b32 s23, s28, 1
    s_and_b32 s22, s28, 1
    s_lshl_b32 s33, s27, 1
    s_add_u32 s22, s22, s33
    s_and_b32 s25, s24, 3
    {"" if "loc" in OPT else AMAP}
    v_lshrrev_b32 v2, 4, v0
    v_lshlrev_b32 v3, 1, v2
    v_and_b32 v4, 15, v0
    v_xor_b32 v3, v3, v4
    v_lshlrev_b32 v3, 4, v3
    v_lshl_add_u32 v8, v2, 8, v3
    v_xor_b32 v9, 0x80, v8
    s_lshl_b32 s29, s27, 2
    s_sub_u32 s29, s29, 8
    s_mul_i32 s30, s28, 2560""")
    def w3():
        g(f"""v_lshrrev_b32 v12, 4, v1
    v_mul_u32_u24 v12, {BS}, v12
    v_and_b32 v13, 15, v1
    v_lshl_add_u32 v12, v13, 4, v12
    v_mov_b32 v16, 0x3f803f80
    v_mov_b32 v17, v16
    v_mov_b32 v18, v16
    v_mov_b32 v19, v16
    v_subrev_u32 v13, 192, v1
    v_mul_u32_u24 v14, {BS}, v13
    v_add_u32 v20, s29, v13
    v_mov_b32 v21, 0x3f80
    v_cmp_gt_i32 vcc, 0, v20
    s_cmp_eq_u32 s24, 3
    s_cbranch_scc1 W3_INIT
    ds_write_b128 v12, v[16:19] offset:{VOFF+2560}
    s_branch W3_DONE
    W3_INIT:
    v_cndmask_b32 v20, 0, v21, vcc
    v_mov_b32 v21, 0
    s_mov_b64 exec, 0xfff
    ds_write_b64 v14, v[20:21] offset:2560
    ds_write_b32 v14, v21 offset:{CNT}
    v_mov_b32 v14, 40960
    ds_write_b32 v14, v21 offset:40960
    s_mov_b64 exec, -1
    W3_DONE:""")
    if "prio0" in OPT: g("s_cmp_lt_u32 s24, 4\ns_cbranch_scc1 P0_SK\ns_setprio 1\nP0_SK:")
    if "eb" in OPT: g("s_cmp_ge_u32 s24, 4\ns_cbranch_scc1 W3_DONE"); w3()
    g("s_waitcnt lgkmcnt(0)")
    if "eb" in OPT: g("s_barrier")
    stamp(g,4); srd(g,72,"s18","s19",None,64*QKV_TB)
    stg={}
    g(f"""s_cmp_lt_u32 s24, 4
    s_cselect_b32 s34, 40960, 0
    s_cselect_b32 s35, {12*BS}, 0
    s_add_u32 s34, s34, s30
    s_add_u32 s34, s34, 40960
    s_mul_i32 s33, s25, {BS}
    s_add_u32 s35, s35, s33
    s_add_i32 s36, s25, s29""")
    for j in range(3):
        g(f"""s_add_u32 m0, s35, {4*j*BS}
        s_add_i32 s33, s36, {4*j}
        s_max_i32 s33, s33, 0
        s_mul_i32 s33, s33, {QKV_TB}
        s_add_u32 s33, s33, s34""")
        g.vmem(f"buffer_load_dwordx4 v8, s[72:75], s33 offen lds")
        g.vmem(f"buffer_load_dwordx4 v9, s[72:75], s33 offen offset:1024 lds")
        g("s_mov_b32 exec_hi, 0")
        stg[j]=g.vmem(f"buffer_load_dwordx4 v8, s[72:75], s33 offen offset:2048 lds")
        g("s_mov_b32 exec_hi, -1")
    srd(g,76,"s18","s19",HO_OFF,64*HO_TB)
    g(f"s_mul_i32 s33, s22, {2*HO_TB}\ns_add_u32 s33, s33, {HO_OFF}")
    srd(g,80,"s18","s19","s33",2*HO_TB)
    srd(g,84,"s18","s19",W2_OFF,68*40*1024)
    g(f"s_mul_i32 s33, s22, {64*1280}\ns_mul_i32 s34, s23, 160\ns_add_u32 s33, s33, s34")
    srd(g,8,"s4","s5","s33",63*1280+160); srd(g,12,"s20","s21","s33",63*1280+160)
    def coff(k): return 40960 if k==3 else CNT+k*BS
    def arrive(k,z,t): g(f"v_mov_b32 v{t}, 1\ns_mov_b64 exec, 1"); g.ds(f"ds_add_u32 v{z}, v{t} offset:{coff(k)}"); g("s_mov_b64 exec, -1")
    def spin(k,z,t,n):
        L=g.label("SP")
        g(f"""s_mov_b32 s33, 0x200000
        {L}:
        ds_read_b32 v{t}, v{z} offset:{coff(k)}
        s_sub_u32 s33, s33, 1
        s_cbranch_scc1 {L}_E
        s_waitcnt lgkmcnt(0)
        v_readfirstlane_b32 s35, v{t}
        s_cmp_lt_u32 s35, {n}
        s_cbranch_scc1 {L}
        {L}_E:"""); g.lwait0()
    LA=g.label("ATT"); LR=g.label("RED")
    def gaddr(j0):
        g(f"""v_lshlrev_b32 v4, 4, v0
        v_add_u32 v5, 4096, v4
        v_lshrrev_b32 v2, 4, v0
        v_and_b32 v3, 15, v0
        v_lshlrev_b32 v6, 4, v3
        v_lshl_add_u32 v6, v2, 9, v6
        v_add_u32 v7, {HO_TB}, v6
        s_mul_i32 s16, s25, 40960
        s_mul_i32 s33, s23, 5120
        s_add_u32 s16, s16, s33
        s_lshl_b32 s17, s25, 11
        s_mul_i32 s38, {j0}, {4*40960}
        s_add_u32 s38, s38, s16
        s_lshl_b32 s39, {j0}, 13
        s_add_u32 s39, s39, s17""")
    tk={}; to={}; LKA=int(os.environ.get("LKA","3"))
    def ldw(j):
        b=FR+36*(j%NST); o=[]
        for nb in range(5): o.append(lambda nb=nb: tk.__setitem__((j,nb),g.vmem(f"buffer_load_dwordx4 {vr(b+4*nb,4)}, v{4+nb//4}, s[84:87], s38 offen offset:{(nb%4)*1024}{' nt' if 'ntw2' in OPT else ''}"+(f"\ns_add_u32 s38, s38, {4*40960}" if nb==4 else ""))))
        return o
    def oreg(j,tg): return FR+36*(j%NST)+20+4*tg
    def ldh(j):
        o=[]
        for tg in range(4): o.append(lambda tg=tg: to.__setitem__((j,tg),g.vmem(f"buffer_load_dwordx4 {vr(oreg(j,tg),4)}, v{6+tg//2}, s[80:83], s39 offen offset:{(tg%2)*256}{' nt' if 'nth' in OPT else ''}"+("\ns_add_u32 s39, s39, 8192" if tg==3 else ""))))
        return o
    def chk(j): g(f"v_max3_u32 v2, v{oreg(j,0)}, v{oreg(j,1)}, v{oreg(j,2)}\nv_max_u32 v2, v2, v{oreg(j,3)}\nv_cmp_eq_u32 vcc, -1, v2\ns_nop 3")
    def retry(q):
        g(f"RT_{q}:\ns_mov_b32 s33, 0x20000\nRTL_{q}:\ns_waitcnt vmcnt(0)\ns_mov_b32 s34, 0")
        for r in range(q,min(17,q+LKA)):
            chk(r); g(f"s_cbranch_vccz RTS_{q}_{r}\ns_mov_b32 s34, 1\ns_add_u32 s35, s37, {(r-12)*8192}")
            for tg in range(4): g(f"buffer_load_dwordx4 {vr(oreg(r,tg),4)}, v{6+tg//2}, s[80:83], s35 offen offset:{(tg%2)*256} sc1")
            g(f"RTS_{q}_{r}:")
        if "ts" in OPT: g(f"s_add_u32 s93, s93, s34")
        g(f"s_sub_u32 s33, s33, 1\ns_cselect_b32 s34, 0, s34\ns_cmp_lg_u32 s34, 0\ns_cbranch_scc1 RTL_{q}\ns_waitcnt vmcnt(0)\ns_branch RTB_{q}")
    def mm(j,ops):
        b=FR+36*(j%NST); per=-(-len(ops)//10)
        for x in range(20):
            nb,tg=x//4,x%4
            g.vwait(max(tk[j,nb],to[j,tg])); a=ACC+4*(nb*4+tg)
            g(f"v_mfma_f32_16x16x32_bf16 {vr(a,4)}, {vr(b+4*nb,4)}, {vr(oreg(j,tg),4)}, {'0' if j==0 else vr(a,4)}")
            if x%2==1 and "noil" not in OPT:
                for _ in range(per):
                    if ops: ops.pop(0)()
        while ops: ops.pop(0)()
    def xres():
        for k in range(2):
            g(f"""v_add_u32 v12, {512*k}, v1
            v_lshrrev_b32 v13, 7, v12
            v_bfe_u32 v14, v12, 5, 2
            v_and_b32 v15, 15, v12
            v_lshl_add_u32 v14, v14, 4, v15
            v_mul_u32_u24 v14, 1280, v14
            v_lshl_add_u32 v14, v13, 5, v14
            v_and_b32 v13, 16, v12
            v_add_u32 v{8+k}, v13, v14""")
            g.vmem(f"buffer_load_dwordx4 {vr(16+4*k,4)}, v{8+k}, s[8:11], 0 offen")
        g(f"""v_lshrrev_b32 v12, 4, v1
        v_lshlrev_b32 v12, 9, v12
        v_lshl_add_u32 v10, v15, 4, v12
        s_mul_i32 s33, s25, {PART}
        v_lshl_add_u32 v11, v0, 4, s33""")
    g(f"s_cmp_ge_u32 s24, 4\ns_cbranch_scc1 {LA}")
    st0=g.state(); stamp(g,11)
    g("""s_and_b32 s33, s22, 7
    s_mul_i32 s33, s33, 3
    s_lshr_b32 s33, s33, 1
    s_and_b32 s34, s23, 3
    s_mul_i32 s34, s34, 3
    s_add_u32 s33, s33, s34
    s_sub_u32 s34, s33, 12
    s_cmp_ge_u32 s33, 12
    s_cselect_b32 s35, s34, s33""")
    if "norot3" in OPT: g("s_mov_b32 s35, 0")
    if "rot2" in OPT: g("s_add_u32 s35, s22, s23\ns_and_b32 s35, s35, 1\ns_mul_i32 s35, s35, 6")
    if "rot4" in OPT: g("s_add_u32 s35, s22, s23\ns_and_b32 s35, s35, 3\ns_mul_i32 s35, s35, 3")
    gaddr("s35")
    g(f"s_add_u32 s36, s16, {48*40960}\ns_add_u32 s37, s17, {12*8192}")
    SPJ=int(os.environ.get("SPJ","0"))
    def loads(j):
        if j<12: return ldh(j)+ldw(j)+[lambda: g("s_cmp_eq_u32 s38, s36\ns_cselect_b32 s38, s16, s38\ns_cselect_b32 s39, s17, s39" if j<11 else "s_mov_b32 s38, s36\ns_mov_b32 s39, s37")]
        o=ldw(j) if j<17 else []
        for q in range(12,17):
            if max(q,SPJ+LKA)==j: o+=ldh(q)
        return o
    if "eb" not in OPT: w3()
    g.lwait0()
    NPRE=int(os.environ.get("NPRE","0")); VAJ=int(os.environ.get("VAJ","0"))
    stamp(g,10); g("s_nop 0" if "eb" in OPT else "s_barrier"); stamp(g,1)
    for j in range(LKA):
        for op in loads(j): op()
        if j==VAJ: g("v_mov_b32 v2, 0"); g.vwait(stg[2]); arrive(2,2,3)
    if "ts" in OPT: g("s_mov_b32 s93, 0")
    for j in range(17):
        if j>=12:
            g.vwait(to[j,3]); chk(j); g(f"s_cbranch_vccnz RT_{j}\nRTB_{j}:")
            if j==12: stamp(g,6); rstamp(g,53)
        if j==max(12-LKA,SPJ): stamp(g,5); rstamp(g,54)
        mm(j,loads(j+LKA))
        if j in (0,5): stamp(g,2+j//5)
        if j==13: xres()
        if j==15: g("v_mov_b32 v2, 40960"); spin(3,2,3,4)
    g("s_nop 7")
    stamp(g,7)
    if "ts" in OPT: g("v_writelane_b32 v25, s93, 52")
    for f in range(20): g.ds(f"ds_write_b128 v11, {vr(ACC+4*f,4)} offset:{f*1024}")
    g.vwait0(); g(f"s_branch {LR}")
    for q in range(12,17): retry(q)
    g(f"{LA}:")
    g.restore(st0)
    if "prio" in OPT: g("s_setprio 1")
    g(f"""v_lshrrev_b32 v2, 5, v0
    v_and_b32 v3, 31, v0
    s_lshl_b32 s31, s27, 2
    s_add_u32 s31, s31, s25
    s_mul_i32 s33, s31, {QKV_TB}
    s_add_u32 s33, s33, s30
    v_lshlrev_b32 v4, 3, v3
    v_lshl_add_u32 v5, v2, 9, v4""")
    for hh,q in ((0,16),(1,72)):
        g.vmem(f"buffer_load_dwordx2 {vr(q,2)}, v5, s[72:75], s33 offen offset:{1280*hh}")
        g.vmem(f"buffer_load_dwordx2 {vr(q+2,2)}, v5, s[72:75], s33 offen offset:{1280*hh+256}")
        qtok=g.vmem(f"buffer_load_dwordx2 {vr(q+4,2)}, v4, s[72:75], s33 offen offset:{1280*hh+1024}")
    if "eb" not in OPT: g("s_barrier")
    g("v_lshlrev_b32 v6, 2, v2\nv_sub_u32 v6, v3, v6\nv_mov_b32 v7, 0xffff\nv_mov_b32 v13, 0xffff0000")
    for r in range(16): g(f"v_cmp_le_i32 s[{40+2*r}:{41+2*r}], {8*(r//4)+r%4}, v6")
    for k in range(8):
        g(f"v_cndmask_b32 v14, 0, v7, s[{40+4*k}:{41+4*k}]\nv_cndmask_b32 v15, 0, v13, s[{42+4*k}:{43+4*k}]\nv_or_b32 v{64+k}, v14, v15")
    g(f"s_mul_i32 s34, s25, {BS}\nv_cmp_lt_u32 vcc, 31, v0")
    KF=[248,32,38]
    def setup(hh):
        g(f"""v_lshrrev_b32 v6, 1, v3
        v_and_b32 v7, 1, v3
        v_lshlrev_b32 v7, 3, v7
        v_add_u32 v7, s34, v7""")
        for (d,expr) in ((10,f"v_lshl_add_u32 v13, v2, 1, {5*hh}"),(11,"v_add_u32 v13, 1, v13"),(12,f"v_mov_b32 v13, {5*hh+4}")):
            g(expr)
            g(f"""v_and_b32 v14, 7, v13
            v_lshlrev_b32 v14, 1, v14
            v_xor_b32 v14, v14, v6
            v_lshl_add_u32 v14, v14, 4, v7
            v_lshl_add_u32 v{d}, v13, 8, v14""")
        g(f"""s_add_u32 s35, s34, 2560
        v_mov_b32 v13, s35
        v_cndmask_b32 v12, v12, v13, vcc""")
    def setup2(hh):
        return f"""v_bfe_u32 v6, v0, 4, 1
        v_and_b32 v7, 3, v0
        v_lshl_add_u32 v6, v6, 2, v7
        v_add_u32 v7, {5*hh}, v6
        v_and_b32 v4, 7, v7
        v_lshlrev_b32 v4, 1, v4
        v_bfe_u32 v5, v0, 3, 1
        v_lshl_add_u32 v5, v2, 1, v5
        v_xor_b32 v4, v4, v5
        v_lshlrev_b32 v4, 4, v4
        v_bfe_u32 v5, v0, 2, 1
        v_lshl_add_u32 v4, v5, 3, v4
        v_cmp_lt_u32 s[36:37], 4, v6
        v_lshlrev_b32 v7, 8, v7
        v_mov_b32 v5, 2560
        s_add_u32 s35, s34, {VOFF}
        v_cndmask_b32 v7, v7, v5, s[36:37]
        v_add3_u32 v28, v7, v4, s35
        v_xor_b32 v29, 64, v28
        v_xor_b32 v30, 128, v28
        v_xor_b32 v31, 192, v28
        s_mul_i32 s33, s28, 2560
        v_lshlrev_b32 v6, 4, v3
        v_lshl_add_u32 v6, v2, 9, v6
        s_mul_i32 s35, s31, {HO_TB}
        s_add_u32 s33, s33, s35
        s_add_u32 s33, s33, {192*512}
        v_add_u32 v15, s33, v6""".split("\n")[:(28,21)[hh]]
    setup(0)
    g("v_mov_b32 v22, 0\nv_mov_b32 v6, 0xf149\nv_mov_b32 v56, 0x3f803f80\nv_mov_b32 v57, 0\nv_mov_b32 v27, 0\nv_cndmask_b32 v56, v56, v57, vcc")
    g.vwait(stg[2]); arrive(1,22,26); g.vwait(qtok)
    g("v_cndmask_b32 v20, v20, v6, vcc\nv_cndmask_b32 v21, v21, v22, vcc\nv_cndmask_b32 v76, v76, v6, vcc\nv_cndmask_b32 v77, v77, v22, vcc")
    spin(1,22,6,4); stamp(g,1)
    orders=([0,8,1,2,3,4,5,6,7],[1,2,0,8,3,4,5,6,7]); kt={}; pos={}; PER=int(os.environ.get("PER","6"))
    def kread(hh,i):
        if i>=9: return
        t=orders[hh][i]; k=KF[i%3]
        g.ds(f"ds_read_b64 {vr(k,2)}, v10 offset:{t*BS}"); g.ds(f"ds_read_b64 {vr(k+2,2)}, v11 offset:{t*BS}")
        kt[hh,i]=g.ds(f"ds_read_b64 {vr(k+4,2)}, v12 offset:{t*BS}")
    def mx(t,first):
        b=S+16*t; o=[]
        for k in range(0,16,2):
            a=f"v{13+(k//2)%2}"
            if first and k<4: o.append(f"v_max_f32 {a}, v{b+k}, v{b+k+1}")
            else: o.append(f"v_max3_f32 {a}, v{b+k}, v{b+k+1}, {a}")
        return o
    def sw(a,b): return [f"v_permlane32_swap_b32 v{a}, v{b}",f"v_permlane32_swap_b32 v{a+1}, v{b+1}"]
    def norm(hh):
        o=[f"v_rcp_f32 v254, v{O+12}\ns_nop 0"]
        for gq in range(3):
            r=O+4*gq; d=((58,60,240),(242,244,62))[hh][gq]
            o+=[f"v_mul_f32 v{r+k}, v{r+k}, v254" for k in range(4)]
            o+=[f"v_cvt_pk_bf16_f32 v{d}, v{r}, v{r+1}",f"v_cvt_pk_bf16_f32 v{d+1}, v{r+2}, v{r+3}"]
        if hh==0: o+=sw(58,60)+["buffer_store_dwordx4 v[58:61], v15, s[76:79], 0 offen sc1"]
        else: o+=sw(242,244)+sw(246,62)+sw(240,244)+["buffer_store_dwordx4 v[240:243], v15, s[76:79], 0 offen offset:1024 sc1",
            "s_mov_b32 exec_lo, 0\nbuffer_store_dwordx4 v[244:247], v15, s[76:79], 0 offen offset:1536 sc1\ns_mov_b32 exec_lo, -1"]
        return o
    VF=[32,36,40,44,48,52]; vt={}
    seq=[(t,m) for t in [1,2,3,4,5,6,7,8,0] for m in range(2)]
    def vread(i):
        if i>=18: return
        t,m=seq[i]; r=VF[i%6]
        g.ds(f"ds_read_b64_tr_b16 {vr(r,2)}, v{28+2*m} offset:{t*BS}")
        vt[i]=g.ds(f"ds_read_b64_tr_b16 {vr(r+2,2)}, v{29+2*m} offset:{t*BS}")
    def pv(i):
        t,m=seq[i]; g.lwait(vt[i])
        g(f"v_mfma_f32_32x32x16_bf16 {vr(O,16)}, {vr(VF[i%6],4)}, {vr(S+16*t+8*m,4)}, {'0' if i==0 else vr(O,16)}"); pos['pv',i]=len(g.L)
        vread(i+6)
    def item(hh,Q):
        order=orders[hh]; q=[(o,None) for o in setup2(hh)]; first=True
        for t in order:
            if t==0:
                if hh==1: q+=[(o,('pv',17)) for o in norm(0)]
                continue
            if t==8: q+=[(f"v_cndmask_b32 v{S+128+r}, v{S+r}, v{S+128+r}, s[{40+2*r}:{41+2*r}]",(hh,8)) for r in range(16)]
            q+=[(o,(hh,t)) for o in mx(t,first)]; first=False
        def pop(n,force=False):
            while n>0 and q:
                o,d=q[0]
                if d is not None:
                    if d not in pos: return
                    lack=12-(len(g.L)-pos[d])
                    if lack>0:
                        if not force: return
                        g(f"s_nop {min(lack,8)-1}")
                        if lack>8: g(f"s_nop {lack-9}")
                        pos[d]=-99
                g(o); q.pop(0); n-=1
        for i in range(9):
            t=order[i]; k=KF[i%3]
            if hh==1 and i<2: pv(15+2*i); pop(PER)
            g.lwait(kt[hh,i])
            g(f"v_mfma_f32_32x32x16_bf16 {vr(S+16*t,16)}, {vr(k,4)}, {vr(Q,4)}, 0"); pop(PER)
            if hh==1 and i==0: pv(16); pop(PER)
            g(f"v_mfma_f32_32x32x8bf16_1k {vr(S+16*t,16)}, {vr(k+4,2)}, {vr(Q+4,2)}, {vr(S+16*t,16)}"); pos[hh,t]=len(g.L)
            kread(hh,i+3)
            if i==8:
                if hh==0: spin(2,22,6,4)
                for x in range(6): vread(x)
            pop(PER if i>5 else PER-1)
        if "ts2" in OPT: stamp(g,10+3*hh)
        pop(99,True)
        g("""v_max_f32 v13, v13, v14
        v_mov_b32 v14, v13
        s_nop 1
        v_permlane32_swap_b32 v13, v14
        v_max_f32 v5, v13, v14
        v_cvt_pk_bf16_f32 v13, -v5, -v5
        v_and_b32 v13, 0xffff0000, v13
        v_sub_f32 v13, -v5, v13
        v_cvt_pk_bf16_f32 v26, -v5, v13
        s_nop 1""")
        def sub(t): g(f"v_mfma_f32_32x32x8bf16_1k {vr(S+16*t,16)}, v[56:57], v[26:27], {vr(S+16*t,16)}")
        sub(1); sub(2)
        if hh==0: setup(1)
        else: g("s_nop 7\ns_nop 3")
        if "ts2" in OPT: stamp(g,11+3*hh)
        for i in range(16):
            t,m=seq[i]; b=S+16*t+8*m
            for k in range(8):
                g(f"v_exp_f32 v{b+k}, v{b+k}")
                if k==1 and i>0: pv(i-1)
                if k==3 and hh==0 and i>=13: kread(1,i-13)
                if k==5 and m==0 and t+2<=8: sub(t+2)
            for k in range(4): g(f"v_cvt_pk_bf16_f32 v{b+k}, v{b+2*k}, v{b+2*k+1}")
            if t==8:
                for k in range(4):
                    b=S+128+8*m+k
                    g(f"v_and_b32 v{b+4}, v{64+4*m+k}, v{b}\nv_xor_b32 v{S+8*m+k}, v{b+4}, v{b}\nv_mov_b32 v{b}, v{b+4}")
        g("s_nop 1")
        if "ts2" in OPT: stamp(g,12+3*hh)
        if hh==1:
            for i in (15,16,17): pv(i)
            g("s_nop 7\ns_nop 3"); g("\n".join(norm(1)))
        stamp(g,2+hh)
    for i in range(3): kread(0,i)
    item(0,16); item(1,72)
    rstamp(g,50); g("v_mov_b32 v7, 40960\ns_setprio 0"); arrive(3,7,6)
    if "ts" in OPT: g.vwait0(); rstamp(g,51)
    stamp(g,5); xres(); g.vwait0()
    g(f"{LR}:")
    g.lwait0(); g("s_barrier"); stamp(g,8)
    g("v_add_u32 v11, 40960, v10")
    def red(k):
        for w in range(4):
            for h in range(2): g(f"ds_read_b128 {vr(32+8*w+4*h,4)}, v{10+w//2} offset:{(w%2)*PART+256*h+16384*k}")
        for w in range(1,4):
            g(f"s_waitcnt lgkmcnt({6-2*w})")
            for q in range(0,8,2): g(f"v_pk_add_f32 {vr(32+q,2)}, {vr(32+q,2)}, {vr(32+8*w+q,2)}")
        for q in range(4):
            x=16+4*k+q
            g(f"v_lshlrev_b32 v28, 16, v{x}\nv_and_b32 v29, 0xffff0000, v{x}\nv_pk_add_f32 {vr(32+2*q,2)}, {vr(32+2*q,2)}, v[28:29]")
            g(f"v_cvt_pk_bf16_f32 v{x}, v{32+2*q}, v{32+2*q+1}")
        g(f"buffer_store_dwordx4 {vr(16+4*k,4)}, v{8+k}, s[12:15], 0 offen{' sc1' if 'osc1' in OPT else ''}")
    red(0)
    g("s_cmp_ge_u32 s24, 2\ns_cbranch_scc1 RED_DONE"); red(1); g("RED_DONE:")
    stamp(g,9); rstamp(g,63); stamp_store(g,1)
```

```python
from gfw import *
S=96; O=80; VOFF=36864; BS=3072
ACC=176; NST=4; FR=32; CNT=2560+64; PART=20480
AMAP="s_and_b32 s28, s47, 1\ns_lshl_b32 s46, s46, 1\ns_add_u32 s28, s28, s46\ns_lshr_b32 s27, s47, 1"
def k23_body(g):
    stamp_init(g,25); rstamp(g,62); stamp(g,0)
    g(f"""s_load_dwordx2 s[18:19], s[0:1], 72
    s_load_dwordx2 s[4:5], s[0:1], 0
    s_load_dwordx2 s[20:21], s[0:1], 56""")
    codepf(g,88,"parallel_sum__sliding_block__glu_gated_bilinear__prompt_kernel","B")
    g(f"""v_mov_b32 v1, v0
    v_lshrrev_b32 v2, 6, v0
    v_and_b32 v0, 63, v0
    v_readfirstlane_b32 s24, v2
    s_and_b32 s46, s2, 7
    s_lshr_b32 s47, s2, 3
    s_lshr_b32 s27, s46, 1
    s_lshl_b32 s27, s27, 2
    s_and_b32 s33, s47, 3
    s_add_u32 s27, s27, s33
    s_and_b32 s28, s46, 1
    s_lshl_b32 s28, s28, 3
    s_lshr_b32 s33, s47, 2
    s_add_u32 s28, s28, s33
    s_lshr_b32 s23, s28, 1
    s_and_b32 s22, s28, 1
    s_lshl_b32 s33, s27, 1
    s_add_u32 s22, s22, s33
    s_and_b32 s25, s24, 3
    {"" if "loc" in OPT else AMAP}
    v_lshrrev_b32 v2, 4, v0
    v_lshlrev_b32 v3, 1, v2
    v_and_b32 v4, 15, v0
    v_xor_b32 v3, v3, v4
    v_lshlrev_b32 v3, 4, v3
    v_lshl_add_u32 v8, v2, 8, v3
    v_xor_b32 v9, 0x80, v8
    s_lshl_b32 s29, s27, 2
    s_sub_u32 s29, s29, 8
    s_mul_i32 s30, s28, 2560""")
    def w3():
        g(f"""v_lshrrev_b32 v12, 4, v1
    v_mul_u32_u24 v12, {BS}, v12
    v_and_b32 v13, 15, v1
    v_lshl_add_u32 v12, v13, 4, v12
    v_mov_b32 v16, 0x3f803f80
    v_mov_b32 v17, v16
    v_mov_b32 v18, v16
    v_mov_b32 v19, v16
    v_subrev_u32 v13, 192, v1
    v_mul_u32_u24 v14, {BS}, v13
    v_add_u32 v20, s29, v13
    v_mov_b32 v21, 0x3f80
    v_cmp_gt_i32 vcc, 0, v20
    s_cmp_eq_u32 s24, 3
    s_cbranch_scc1 W3_INIT
    ds_write_b128 v12, v[16:19] offset:{VOFF+2560}
    s_branch W3_DONE
    W3_INIT:
    v_cndmask_b32 v20, 0, v21, vcc
    v_mov_b32 v21, 0
    s_mov_b64 exec, 0xfff
    ds_write_b64 v14, v[20:21] offset:2560
    ds_write_b32 v14, v21 offset:{CNT}
    v_mov_b32 v14, 40960
    ds_write_b32 v14, v21 offset:40960
    s_mov_b64 exec, -1
    W3_DONE:""")
    g("s_cmp_lt_u32 s24, 4\ns_cbranch_scc1 P0_SK\ns_setprio 1\nP0_SK:")
    g("s_cmp_ge_u32 s24, 4\ns_cbranch_scc1 W3_DONE"); w3()
    g("s_waitcnt lgkmcnt(0)\ns_barrier")
    srd(g,72,"s18","s19",None,64*QKV_TB)
    stg={}
    g(f"""s_cmp_lt_u32 s24, 4
    s_cselect_b32 s34, 40960, 0
    s_cselect_b32 s35, {12*BS}, 0
    s_add_u32 s34, s34, s30
    s_add_u32 s34, s34, 40960
    s_mul_i32 s33, s25, {BS}
    s_add_u32 s35, s35, s33
    s_add_i32 s36, s25, s29""")
    for j in range(3):
        g(f"""s_add_u32 m0, s35, {4*j*BS}
        s_add_i32 s33, s36, {4*j}
        s_max_i32 s33, s33, 0
        s_mul_i32 s33, s33, {QKV_TB}
        s_add_u32 s33, s33, s34""")
        g.vmem(f"buffer_load_dwordx4 v8, s[72:75], s33 offen lds")
        g.vmem(f"buffer_load_dwordx4 v9, s[72:75], s33 offen offset:1024 lds")
        g("s_mov_b32 exec_hi, 0")
        stg[j]=g.vmem(f"buffer_load_dwordx4 v8, s[72:75], s33 offen offset:2048 lds")
        g("s_mov_b32 exec_hi, -1")
    srd(g,76,"s18","s19",HO_OFF,64*HO_TB)
    g(f"s_mul_i32 s33, s22, {2*HO_TB}\ns_add_u32 s33, s33, {HO_OFF}")
    srd(g,80,"s18","s19","s33",2*HO_TB)
    srd(g,84,"s18","s19",W2_OFF,68*40*1024)
    g(f"s_mul_i32 s33, s22, {64*1280}\ns_mul_i32 s34, s23, 160\ns_add_u32 s33, s33, s34")
    srd(g,8,"s4","s5","s33",63*1280+160); srd(g,12,"s20","s21","s33",63*1280+160)
    def coff(k): return 40960 if k==3 else CNT+k*BS
    def arrive(k,z,t): g(f"v_mov_b32 v{t}, 1\ns_mov_b64 exec, 1"); g.ds(f"ds_add_u32 v{z}, v{t} offset:{coff(k)}"); g("s_mov_b64 exec, -1")
    def spin(k,z,t,n):
        L=g.label("SP")
        g(f"""s_mov_b32 s33, 0x200000
        {L}:
        ds_read_b32 v{t}, v{z} offset:{coff(k)}
        s_sub_u32 s33, s33, 1
        s_cbranch_scc1 {L}_E
        s_waitcnt lgkmcnt(0)
        v_readfirstlane_b32 s35, v{t}
        s_cmp_lt_u32 s35, {n}
        s_cbranch_scc1 {L}
        {L}_E:"""); g.lwait0()
    LA=g.label("ATT"); LR=g.label("RED")
    def gaddr(j0):
        g(f"""v_lshlrev_b32 v4, 4, v0
        v_add_u32 v5, 4096, v4
        v_lshrrev_b32 v2, 4, v0
        v_and_b32 v3, 15, v0
        v_lshlrev_b32 v6, 4, v3
        v_lshl_add_u32 v6, v2, 9, v6
        v_add_u32 v7, {HO_TB}, v6
        s_mul_i32 s16, s25, 40960
        s_mul_i32 s33, s23, 5120
        s_add_u32 s16, s16, s33
        s_lshl_b32 s17, s25, 11
        s_mul_i32 s38, {j0}, {4*40960}
        s_add_u32 s38, s38, s16
        s_lshl_b32 s39, {j0}, 13
        s_add_u32 s39, s39, s17""")
    tk={}; to={}; LKA=int(os.environ.get("LKA","3"))
    def ldw(j):
        b=FR+36*(j%NST); o=[]
        for nb in range(5): o.append(lambda nb=nb: tk.__setitem__((j,nb),g.vmem(f"buffer_load_dwordx4 {vr(b+4*nb,4)}, v{4+nb//4}, s[84:87], s38 offen offset:{(nb%4)*1024}"+(f"\ns_add_u32 s38, s38, {4*40960}" if nb==4 else ""))))
        return o
    def oreg(j,tg): return FR+36*(j%NST)+20+4*tg
    def ldh(j):
        o=[]
        for tg in range(4): o.append(lambda tg=tg: to.__setitem__((j,tg),g.vmem(f"buffer_load_dwordx4 {vr(oreg(j,tg),4)}, v{6+tg//2}, s[80:83], s39 offen offset:{(tg%2)*256}"+("\ns_add_u32 s39, s39, 8192" if tg==3 else ""))))
        return o
    def chk(j): g(f"v_max3_u32 v2, v{oreg(j,0)}, v{oreg(j,1)}, v{oreg(j,2)}\nv_max_u32 v2, v2, v{oreg(j,3)}\nv_cmp_eq_u32 vcc, -1, v2\ns_nop 3")
    def retry(q):
        g(f"RT_{q}:\ns_mov_b32 s33, 0x20000\nRTL_{q}:\ns_waitcnt vmcnt(0)\ns_mov_b32 s34, 0")
        for r in range(q,min(17,q+LKA)):
            chk(r); g(f"s_cbranch_vccz RTS_{q}_{r}\ns_mov_b32 s34, 1\ns_add_u32 s35, s37, {(r-12)*8192}")
            for tg in range(4): g(f"buffer_load_dwordx4 {vr(oreg(r,tg),4)}, v{6+tg//2}, s[80:83], s35 offen offset:{(tg%2)*256} sc1")
            g(f"RTS_{q}_{r}:")
        if "ts" in OPT: g(f"s_add_u32 s93, s93, s34")
        g(f"s_sub_u32 s33, s33, 1\ns_cselect_b32 s34, 0, s34\ns_cmp_lg_u32 s34, 0\ns_cbranch_scc1 RTL_{q}\ns_waitcnt vmcnt(0)\ns_branch RTB_{q}")
    def mm(j,ops):
        b=FR+36*(j%NST); per=-(-len(ops)//10)
        for x in range(20):
            nb,tg=x//4,x%4
            g.vwait(max(tk[j,nb],to[j,tg])); a=ACC+4*(nb*4+tg)
            g(f"v_mfma_f32_16x16x32_bf16 {vr(a,4)}, {vr(b+4*nb,4)}, {vr(oreg(j,tg),4)}, {'0' if j==0 else vr(a,4)}")
            if x%2==1 and "noil" not in OPT:
                for _ in range(per):
                    if ops: ops.pop(0)()
        while ops: ops.pop(0)()
    def xres():
        for k in range(2):
            g(f"""v_add_u32 v12, {512*k}, v1
            v_lshrrev_b32 v13, 7, v12
            v_bfe_u32 v14, v12, 5, 2
            v_and_b32 v15, 15, v12
            v_lshl_add_u32 v14, v14, 4, v15
            v_mul_u32_u24 v14, 1280, v14
            v_lshl_add_u32 v14, v13, 5, v14
            v_and_b32 v13, 16, v12
            v_add_u32 v{8+k}, v13, v14""")
            g.vmem(f"buffer_load_dwordx4 {vr(16+4*k,4)}, v{8+k}, s[8:11], 0 offen")
        g(f"""v_lshrrev_b32 v12, 4, v1
        v_lshlrev_b32 v12, 9, v12
        v_lshl_add_u32 v10, v15, 4, v12
        s_mul_i32 s33, s25, {PART}
        v_lshl_add_u32 v11, v0, 4, s33""")
    g(f"s_cmp_ge_u32 s24, 4\ns_cbranch_scc1 {LA}")
    st0=g.state()
    g("""s_and_b32 s33, s22, 7
    s_mul_i32 s33, s33, 3
    s_lshr_b32 s33, s33, 1
    s_and_b32 s34, s23, 3
    s_mul_i32 s34, s34, 3
    s_add_u32 s33, s33, s34
    s_sub_u32 s34, s33, 12
    s_cmp_ge_u32 s33, 12
    s_cselect_b32 s35, s34, s33""")
    if "norot3" in OPT: g("s_mov_b32 s35, 0")
    if "rot2" in OPT: g("s_add_u32 s35, s22, s23\ns_and_b32 s35, s35, 1\ns_mul_i32 s35, s35, 6")
    if "rot4" in OPT: g("s_add_u32 s35, s22, s23\ns_and_b32 s35, s35, 3\ns_mul_i32 s35, s35, 3")
    gaddr("s35")
    g(f"s_add_u32 s36, s16, {48*40960}\ns_add_u32 s37, s17, {12*8192}")
    SPJ=int(os.environ.get("SPJ","0"))
    def loads(j):
        if j<12: return ldh(j)+ldw(j)+[lambda: g("s_cmp_eq_u32 s38, s36\ns_cselect_b32 s38, s16, s38\ns_cselect_b32 s39, s17, s39" if j<11 else "s_mov_b32 s38, s36\ns_mov_b32 s39, s37")]
        o=ldw(j) if j<17 else []
        for q in range(12,17):
            if max(q,SPJ+LKA)==j: o+=ldh(q)
        return o
    g.lwait0()
    NPRE=int(os.environ.get("NPRE","0")); VAJ=int(os.environ.get("VAJ","0"))
    stamp(g,1)
    for j in range(LKA):
        for op in loads(j): op()
        if j==VAJ: g("v_mov_b32 v2, 0"); g.vwait(stg[2]); arrive(2,2,3)
    if "ts" in OPT: g("s_mov_b32 s93, 0")
    for j in range(17):
        if j>=12:
            g.vwait(to[j,3]); chk(j); g(f"s_cbranch_vccnz RT_{j}\nRTB_{j}:")
            if j==12: stamp(g,6); rstamp(g,53)
        if j==max(12-LKA,SPJ): stamp(g,5); rstamp(g,54)
        mm(j,loads(j+LKA))
        if j in (0,5): stamp(g,2+j//5)
        if j==13: xres()
        if j==15: g("v_mov_b32 v2, 40960"); spin(3,2,3,4)
    g("s_nop 7")
    stamp(g,7)
    if "ts" in OPT: g("v_writelane_b32 v25, s93, 52")
    for f in range(20): g.ds(f"ds_write_b128 v11, {vr(ACC+4*f,4)} offset:{f*1024}")
    g.vwait0(); g(f"s_branch {LR}")
    for q in range(12,17): retry(q)
    g(f"{LA}:")
    g.restore(st0)
    if "prio" in OPT: g("s_setprio 1")
    g(f"""v_lshrrev_b32 v2, 5, v0
    v_and_b32 v3, 31, v0
    s_lshl_b32 s31, s27, 2
    s_add_u32 s31, s31, s25
    s_mul_i32 s33, s31, {QKV_TB}
    s_add_u32 s33, s33, s30
    v_lshlrev_b32 v4, 3, v3
    v_lshl_add_u32 v5, v2, 9, v4""")
    for hh,q in ((0,16),(1,72)):
        g.vmem(f"buffer_load_dwordx2 {vr(q,2)}, v5, s[72:75], s33 offen offset:{1280*hh}")
        g.vmem(f"buffer_load_dwordx2 {vr(q+2,2)}, v5, s[72:75], s33 offen offset:{1280*hh+256}")
        qtok=g.vmem(f"buffer_load_dwordx2 {vr(q+4,2)}, v4, s[72:75], s33 offen offset:{1280*hh+1024}")
    g("v_lshlrev_b32 v6, 2, v2\nv_sub_u32 v6, v3, v6\nv_mov_b32 v7, 0xffff\nv_mov_b32 v13, 0xffff0000")
    for r in range(16): g(f"v_cmp_le_i32 s[{40+2*r}:{41+2*r}], {8*(r//4)+r%4}, v6")
    for k in range(8):
        g(f"v_cndmask_b32 v14, 0, v7, s[{40+4*k}:{41+4*k}]\nv_cndmask_b32 v15, 0, v13, s[{42+4*k}:{43+4*k}]\nv_or_b32 v{64+k}, v14, v15")
    g(f"s_mul_i32 s34, s25, {BS}\nv_cmp_lt_u32 vcc, 31, v0")
    KF=[32,40,48]
    def setup(hh):
        g(f"""v_lshrrev_b32 v6, 1, v3
        v_and_b32 v7, 1, v3
        v_lshlrev_b32 v7, 3, v7
        v_add_u32 v7, s34, v7""")
        for (d,expr) in ((10,f"v_lshl_add_u32 v13, v2, 1, {5*hh}"),(11,"v_add_u32 v13, 1, v13"),(12,f"v_mov_b32 v13, {5*hh+4}")):
            g(expr)
            g(f"""v_and_b32 v14, 7, v13
            v_lshlrev_b32 v14, 1, v14
            v_xor_b32 v14, v14, v6
            v_lshl_add_u32 v14, v14, 4, v7
            v_lshl_add_u32 v{d}, v13, 8, v14""")
        g(f"""s_add_u32 s35, s34, 2560
        v_mov_b32 v13, s35
        v_cndmask_b32 v12, v12, v13, vcc""")
        for k in KF: g(f"v_mov_b32 v{k+6}, 0\nv_mov_b32 v{k+7}, 0")
    def setup2(hh):
        return f"""v_bfe_u32 v6, v0, 4, 1
        v_and_b32 v7, 3, v0
        v_lshl_add_u32 v6, v6, 2, v7
        v_add_u32 v7, {5*hh}, v6
        v_and_b32 v4, 7, v7
        v_lshlrev_b32 v4, 1, v4
        v_bfe_u32 v5, v0, 3, 1
        v_lshl_add_u32 v5, v2, 1, v5
        v_xor_b32 v4, v4, v5
        v_lshlrev_b32 v4, 4, v4
        v_bfe_u32 v5, v0, 2, 1
        v_lshl_add_u32 v4, v5, 3, v4
        v_cmp_lt_u32 s[36:37], 4, v6
        v_lshlrev_b32 v7, 8, v7
        v_mov_b32 v5, 2560
        s_add_u32 s35, s34, {VOFF}
        v_cndmask_b32 v7, v7, v5, s[36:37]
        v_add3_u32 v28, v7, v4, s35
        v_xor_b32 v29, 64, v28
        v_xor_b32 v30, 128, v28
        v_xor_b32 v31, 192, v28
        s_mul_i32 s33, s28, 2560
        v_lshlrev_b32 v6, 4, v3
        v_lshl_add_u32 v6, v2, 9, v6
        s_mul_i32 s35, s31, {HO_TB}
        s_add_u32 s33, s33, s35
        s_add_u32 s33, s33, {192*512}
        v_add_u32 v15, s33, v6""".split("\n")
    setup(0)
    g("v_mov_b32 v22, 0\nv_mov_b32 v23, 0\nv_mov_b32 v78, 0\nv_mov_b32 v79, 0\nv_mov_b32 v6, 0xf149\nv_mov_b32 v56, 0x3f803f80\nv_mov_b32 v57, 0\nv_mov_b32 v27, 0\nv_cndmask_b32 v56, v56, v57, vcc")
    g.vwait(stg[2]); arrive(1,22,26); g.vwait(qtok)
    g("v_cndmask_b32 v20, v20, v6, vcc\nv_cndmask_b32 v21, v21, v22, vcc\nv_cndmask_b32 v76, v76, v6, vcc\nv_cndmask_b32 v77, v77, v22, vcc")
    spin(1,22,6,4); stamp(g,1)
    order=[0,8,1,2,3,4,5,6,7]
    def item(hh,Q):
        kt={}
        def kread(i):
            if i>=9: return
            t=order[i]; k=KF[i%3]
            g.ds(f"ds_read_b64 {vr(k,2)}, v10 offset:{t*BS}"); g.ds(f"ds_read_b64 {vr(k+2,2)}, v11 offset:{t*BS}")
            kt[i]=g.ds(f"ds_read_b64 {vr(k+4,2)}, v12 offset:{t*BS}")
        def mx(t,first):
            b=S+16*t; o=[]
            for k in range(0,16,2):
                a=f"v{13+(k//2)%2}"
                if first and k<4: o.append(f"v_max_f32 {a}, v{b+k}, v{b+k+1}")
                else: o.append(f"v_max3_f32 {a}, v{b+k}, v{b+k+1}, {a}")
            return o
        for i in range(3): kread(i)
        s2=setup2(hh)
        for i in range(9):
            t=order[i]; k=KF[i%3]; g.lwait(kt[i])
            g(f"v_mfma_f32_32x32x16_bf16 {vr(S+16*t,16)}, {vr(k,4)}, {vr(Q,4)}, 0")
            g(f"v_mfma_f32_32x32x16_bf16 {vr(S+16*t,16)}, {vr(k+4,4)}, {vr(Q+4,4)}, {vr(S+16*t,16)}")
            kread(i+3)
            if i<3: g("\n".join(s2[11*i:11*i+11]))
            elif i==3:
                for r in range(16): g(f"v_cndmask_b32 v{S+128+r}, v{S+r}, v{S+128+r}, s[{40+2*r}:{41+2*r}]")
                g("\n".join(mx(8,True)))
            else: g("\n".join(mx(order[i-2],False)))
        VF=[32,36,40,44,48,52]; vt={}
        seq=[(t,m) for t in [1,2,3,4,5,6,7,8,0] for m in range(2)]
        def vread(i):
            if i>=18: return
            t,m=seq[i]; r=VF[i%6]
            g.ds(f"ds_read_b64_tr_b16 {vr(r,2)}, v{28+2*m} offset:{t*BS}")
            vt[i]=g.ds(f"ds_read_b64_tr_b16 {vr(r+2,2)}, v{29+2*m} offset:{t*BS}")
        g("\n".join(mx(6,False)))
        if "ts2" in OPT: stamp(g,10+3*hh)
        if hh==0: spin(2,22,6,4)
        for i in range(6): vread(i)
        g("s_nop 4"); g("\n".join(mx(7,False)))
        g("""v_max_f32 v13, v13, v14
        v_mov_b32 v14, v13
        s_nop 1
        v_permlane32_swap_b32 v13, v14
        v_max_f32 v12, v13, v14
        v_cvt_pk_bf16_f32 v13, -v12, -v12
        v_and_b32 v13, 0xffff0000, v13
        v_sub_f32 v13, -v12, v13
        v_cvt_pk_bf16_f32 v26, -v12, v13
        s_nop 1""")
        def sub(t): g(f"v_mfma_f32_32x32x8bf16_1k {vr(S+16*t,16)}, v[56:57], v[26:27], {vr(S+16*t,16)}")
        sub(1); sub(2); g("s_nop 7\ns_nop 3")
        if "ts2" in OPT: stamp(g,11+3*hh)
        def pv(i):
            t,m=seq[i]; g.lwait(vt[i])
            g(f"v_mfma_f32_32x32x16_bf16 {vr(O,16)}, {vr(VF[i%6],4)}, {vr(S+16*t+8*m,4)}, {'0' if i==0 else vr(O,16)}")
            vread(i+6)
        for i in range(16):
            t,m=seq[i]; b=S+16*t+8*m
            for k in range(8):
                g(f"v_exp_f32 v{b+k}, v{b+k}")
                if k==1 and i>0: pv(i-1)
                if k==5 and m==0 and t+2<=8: sub(t+2)
            for k in range(4): g(f"v_cvt_pk_bf16_f32 v{b+k}, v{b+2*k}, v{b+2*k+1}")
            if t==8:
                for k in range(4):
                    b=S+128+8*m+k
                    g(f"v_and_b32 v{b+4}, v{64+4*m+k}, v{b}\nv_xor_b32 v{S+8*m+k}, v{b+4}, v{b}\nv_mov_b32 v{b}, v{b+4}")
        g("s_nop 1")
        if "ts2" in OPT: stamp(g,12+3*hh)
        for i in (15,16,17): pv(i)
        if hh==0: setup(1)
        else: g("s_nop 7\ns_nop 3")
        g(f"v_rcp_f32 v14, v{O+12}\ns_nop 0")
        for gq in range(3):
            r=O+4*gq; d=((58,60,240),(242,244,62))[hh][gq]
            for k in range(4): g(f"v_mul_f32 v{r+k}, v{r+k}, v14")
            g(f"v_cvt_pk_bf16_f32 v{d}, v{r}, v{r+1}\nv_cvt_pk_bf16_f32 v{d+1}, v{r+2}, v{r+3}")
        def sw(a,b): g(f"v_permlane32_swap_b32 v{a}, v{b}\nv_permlane32_swap_b32 v{a+1}, v{b+1}")
        if hh==0:
            sw(58,60); g.vmem("buffer_store_dwordx4 v[58:61], v15, s[76:79], 0 offen sc1",'st')
        else:
            sw(242,244); sw(246,62); sw(240,244)
            g.vmem("buffer_store_dwordx4 v[240:243], v15, s[76:79], 0 offen offset:1024 sc1",'st')
            g("s_mov_b32 exec_lo, 0")
            g.vmem("buffer_store_dwordx4 v[244:247], v15, s[76:79], 0 offen offset:1536 sc1",'st')
            g("s_mov_b32 exec_lo, -1")
        stamp(g,2+hh)
    item(0,16); item(1,72)
    rstamp(g,50); g("v_mov_b32 v7, 40960\ns_setprio 0"); arrive(3,7,6)
    if "ts" in OPT: g.vwait0(); rstamp(g,51)
    stamp(g,5); xres(); g.vwait0()
    g(f"{LR}:")
    g.lwait0(); g("s_barrier"); stamp(g,8)
    g("v_add_u32 v11, 40960, v10")
    def red(k):
        for w in range(4):
            for h in range(2): g(f"ds_read_b128 {vr(32+8*w+4*h,4)}, v{10+w//2} offset:{(w%2)*PART+256*h+16384*k}")
        for w in range(1,4):
            g(f"s_waitcnt lgkmcnt({6-2*w})")
            for q in range(0,8,2): g(f"v_pk_add_f32 {vr(32+q,2)}, {vr(32+q,2)}, {vr(32+8*w+q,2)}")
        for q in range(4):
            x=16+4*k+q
            g(f"v_lshlrev_b32 v28, 16, v{x}\nv_and_b32 v29, 0xffff0000, v{x}\nv_pk_add_f32 {vr(32+2*q,2)}, {vr(32+2*q,2)}, v[28:29]")
            g(f"v_cvt_pk_bf16_f32 v{x}, v{32+2*q}, v{32+2*q+1}")
        g(f"buffer_store_dwordx4 {vr(16+4*k,4)}, v{8+k}, s[12:15], 0 offen{' sc1' if 'osc1' in OPT else ''}")
    red(0)
    g("s_cmp_ge_u32 s24, 2\ns_cbranch_scc1 RED_DONE"); red(1); g("RED_DONE:")
    stamp(g,9); rstamp(g,63); stamp_store(g,1)
```

```python
import sys
from gfw import *
import k1, k23_v4e as k23
N="parallel_sum__sliding_block__glu_gated_bilinear__prompt"
hdr=open(f"cdna_kernels/{N}.s.ref").read().split("; @launch")[0]
ks=[("k1_kernel",k1.k1_body,512,159744),(N+"_kernel",k23.k23_body,512,82048)]
o=[hdr.rstrip("\n")]
for n,f,b,l in ks: o.append(f"; @launch kernel={n} grid=(256,1,1) block=({b},1,1) lds={l}")
o.append('.amdgcn_target "amdgcn-amd-amdhsa--gfx950"\n.text')
for i,(n,f,b,l) in enumerate(ks):
    g=G(); g.lab=1000*i
    g(f"s_cmp_ge_u32 s2, 256\ns_cbranch_scc1 END_{i}"); f(g); g(f"END_{i}:\ns_endpgm")
    o.append(khead(n)); o.append(g.text())
o.append('CODE_END:\n.section .rodata,"a"')
for n,f,b,l in ks: o.append(kdesc(n))
open(sys.argv[1],"w").write("\n".join(o)+"\n")
```

```python
from gfw import *
S=96; O=80; VOFF=36864; BS=3072
ACC=176; NST=4; FR=32; CNT=2560+64; PART=20480
AMAP="s_and_b32 s28, s47, 1\ns_lshl_b32 s46, s46, 1\ns_add_u32 s28, s28, s46\ns_lshr_b32 s27, s47, 1"
def k23_body(g):
    stamp_init(g,25); rstamp(g,62); stamp(g,0)
    g(f"""s_load_dwordx2 s[18:19], s[0:1], 72
    s_load_dwordx2 s[4:5], s[0:1], 0
    s_load_dwordx2 s[20:21], s[0:1], 56""")
    codepf(g,88,"parallel_sum__sliding_block__glu_gated_bilinear__prompt_kernel","B")
    g(f"""v_mov_b32 v1, v0
    v_lshrrev_b32 v2, 6, v0
    v_and_b32 v0, 63, v0
    v_readfirstlane_b32 s24, v2
    s_and_b32 s46, s2, 7
    s_lshr_b32 s47, s2, 3
    s_lshr_b32 s27, s46, 1
    s_lshl_b32 s27, s27, 2
    s_and_b32 s33, s47, 3
    s_add_u32 s27, s27, s33
    s_and_b32 s28, s46, 1
    s_lshl_b32 s28, s28, 3
    s_lshr_b32 s33, s47, 2
    s_add_u32 s28, s28, s33
    s_lshr_b32 s23, s28, 1
    s_and_b32 s22, s28, 1
    s_lshl_b32 s33, s27, 1
    s_add_u32 s22, s22, s33
    s_and_b32 s25, s24, 3
    {"" if "loc" in OPT else AMAP}
    v_lshrrev_b32 v2, 4, v0
    v_lshlrev_b32 v3, 1, v2
    v_and_b32 v4, 15, v0
    v_xor_b32 v3, v3, v4
    v_lshlrev_b32 v3, 4, v3
    v_lshl_add_u32 v8, v2, 8, v3
    v_xor_b32 v9, 0x80, v8
    s_lshl_b32 s29, s27, 2
    s_sub_u32 s29, s29, 8
    s_mul_i32 s30, s28, 2560""")
    def w3():
        g(f"""v_lshrrev_b32 v12, 4, v1
    v_mul_u32_u24 v12, {BS}, v12
    v_and_b32 v13, 15, v1
    v_lshl_add_u32 v12, v13, 4, v12
    v_mov_b32 v16, 0x3f803f80
    v_mov_b32 v17, v16
    v_mov_b32 v18, v16
    v_mov_b32 v19, v16
    v_subrev_u32 v13, 192, v1
    v_mul_u32_u24 v14, {BS}, v13
    v_add_u32 v20, s29, v13
    v_mov_b32 v21, 0x3f80
    v_cmp_gt_i32 vcc, 0, v20
    s_cmp_eq_u32 s24, 3
    s_cbranch_scc1 W3_INIT
    ds_write_b128 v12, v[16:19] offset:{VOFF+2560}
    s_branch W3_DONE
    W3_INIT:
    v_cndmask_b32 v20, 0, v21, vcc
    v_mov_b32 v21, 0
    s_mov_b64 exec, 0xfff
    ds_write_b64 v14, v[20:21] offset:2560
    ds_write_b32 v14, v21 offset:{CNT}
    v_mov_b32 v14, 40960
    ds_write_b32 v14, v21 offset:40960
    s_mov_b64 exec, -1
    W3_DONE:""")
    if "prio0" in OPT: g("s_cmp_lt_u32 s24, 4\ns_cbranch_scc1 P0_SK\ns_setprio 1\nP0_SK:")
    if "eb" in OPT: g("s_cmp_ge_u32 s24, 4\ns_cbranch_scc1 W3_DONE"); w3()
    g("s_waitcnt lgkmcnt(0)")
    if "eb" in OPT: g("s_barrier")
    stamp(g,4); srd(g,72,"s18","s19",None,64*QKV_TB)
    stg={}
    g(f"""s_cmp_lt_u32 s24, 4
    s_cselect_b32 s34, 40960, 0
    s_cselect_b32 s35, {12*BS}, 0
    s_add_u32 s34, s34, s30
    s_add_u32 s34, s34, 40960
    s_mul_i32 s33, s25, {BS}
    s_add_u32 s35, s35, s33
    s_add_i32 s36, s25, s29""")
    for j in range(3):
        g(f"""s_add_u32 m0, s35, {4*j*BS}
        s_add_i32 s33, s36, {4*j}
        s_max_i32 s33, s33, 0
        s_mul_i32 s33, s33, {QKV_TB}
        s_add_u32 s33, s33, s34""")
        g.vmem(f"buffer_load_dwordx4 v8, s[72:75], s33 offen lds")
        g.vmem(f"buffer_load_dwordx4 v9, s[72:75], s33 offen offset:1024 lds")
        g("s_mov_b32 exec_hi, 0")
        stg[j]=g.vmem(f"buffer_load_dwordx4 v8, s[72:75], s33 offen offset:2048 lds")
        g("s_mov_b32 exec_hi, -1")
    srd(g,76,"s18","s19",HO_OFF,64*HO_TB)
    g(f"s_mul_i32 s33, s22, {2*HO_TB}\ns_add_u32 s33, s33, {HO_OFF}")
    srd(g,80,"s18","s19","s33",2*HO_TB)
    srd(g,84,"s18","s19",W2_OFF,68*40*1024)
    g(f"s_mul_i32 s33, s22, {64*1280}\ns_mul_i32 s34, s23, 160\ns_add_u32 s33, s33, s34")
    srd(g,8,"s4","s5","s33",63*1280+160); srd(g,12,"s20","s21","s33",63*1280+160)
    def coff(k): return 40960 if k==3 else CNT+k*BS
    def arrive(k,z,t): g(f"v_mov_b32 v{t}, 1\ns_mov_b64 exec, 1"); g.ds(f"ds_add_u32 v{z}, v{t} offset:{coff(k)}"); g("s_mov_b64 exec, -1")
    def spin(k,z,t,n):
        L=g.label("SP")
        g(f"""s_mov_b32 s33, 0x200000
        {L}:
        ds_read_b32 v{t}, v{z} offset:{coff(k)}
        s_sub_u32 s33, s33, 1
        s_cbranch_scc1 {L}_E
        s_waitcnt lgkmcnt(0)
        v_readfirstlane_b32 s35, v{t}
        s_cmp_lt_u32 s35, {n}
        s_cbranch_scc1 {L}
        {L}_E:"""); g.lwait0()
    LA=g.label("ATT"); LR=g.label("RED")
    def gaddr(j0):
        g(f"""v_lshlrev_b32 v4, 4, v0
        v_add_u32 v5, 4096, v4
        v_lshrrev_b32 v2, 4, v0
        v_and_b32 v3, 15, v0
        v_lshlrev_b32 v6, 4, v3
        v_lshl_add_u32 v6, v2, 9, v6
        v_add_u32 v7, {HO_TB}, v6
        s_mul_i32 s16, s25, 40960
        s_mul_i32 s33, s23, 5120
        s_add_u32 s16, s16, s33
        s_lshl_b32 s17, s25, 11
        s_mul_i32 s38, {j0}, {4*40960}
        s_add_u32 s38, s38, s16
        s_lshl_b32 s39, {j0}, 13
        s_add_u32 s39, s39, s17""")
    tk={}; to={}; LKA=int(os.environ.get("LKA","3"))
    def ldw(j):
        b=FR+36*(j%NST); o=[]
        for nb in range(5): o.append(lambda nb=nb: tk.__setitem__((j,nb),g.vmem(f"buffer_load_dwordx4 {vr(b+4*nb,4)}, v{4+nb//4}, s[84:87], s38 offen offset:{(nb%4)*1024}{' nt' if 'ntw2' in OPT else ''}"+(f"\ns_add_u32 s38, s38, {4*40960}" if nb==4 else ""))))
        return o
    def oreg(j,tg): return FR+36*(j%NST)+20+4*tg
    def ldh(j):
        o=[]
        for tg in range(4): o.append(lambda tg=tg: to.__setitem__((j,tg),g.vmem(f"buffer_load_dwordx4 {vr(oreg(j,tg),4)}, v{6+tg//2}, s[80:83], s39 offen offset:{(tg%2)*256}{' nt' if 'nth' in OPT else ''}"+("\ns_add_u32 s39, s39, 8192" if tg==3 else ""))))
        return o
    def chk(j): g(f"v_max3_u32 v2, v{oreg(j,0)}, v{oreg(j,1)}, v{oreg(j,2)}\nv_max_u32 v2, v2, v{oreg(j,3)}\nv_cmp_eq_u32 vcc, -1, v2\ns_nop 3")
    def retry(q):
        g(f"RT_{q}:\ns_mov_b32 s33, 0x20000\nRTL_{q}:\ns_waitcnt vmcnt(0)\ns_mov_b32 s34, 0")
        for r in range(q,min(17,q+LKA)):
            chk(r); g(f"s_cbranch_vccz RTS_{q}_{r}\ns_mov_b32 s34, 1\ns_add_u32 s35, s37, {(r-12)*8192}")
            for tg in range(4): g(f"buffer_load_dwordx4 {vr(oreg(r,tg),4)}, v{6+tg//2}, s[80:83], s35 offen offset:{(tg%2)*256} sc1")
            g(f"RTS_{q}_{r}:")
        if "ts" in OPT: g(f"s_add_u32 s93, s93, s34")
        g(f"s_sub_u32 s33, s33, 1\ns_cselect_b32 s34, 0, s34\ns_cmp_lg_u32 s34, 0\ns_cbranch_scc1 RTL_{q}\ns_waitcnt vmcnt(0)\ns_branch RTB_{q}")
    def mm(j,ops):
        b=FR+36*(j%NST); per=-(-len(ops)//10)
        for x in range(20):
            nb,tg=x//4,x%4
            g.vwait(max(tk[j,nb],to[j,tg])); a=ACC+4*(nb*4+tg)
            g(f"v_mfma_f32_16x16x32_bf16 {vr(a,4)}, {vr(b+4*nb,4)}, {vr(oreg(j,tg),4)}, {'0' if j==0 else vr(a,4)}")
            if x%2==1 and "noil" not in OPT:
                for _ in range(per):
                    if ops: ops.pop(0)()
        while ops: ops.pop(0)()
    def xres():
        for k in range(2):
            g(f"""v_add_u32 v12, {512*k}, v1
            v_lshrrev_b32 v13, 7, v12
            v_bfe_u32 v14, v12, 5, 2
            v_and_b32 v15, 15, v12
            v_lshl_add_u32 v14, v14, 4, v15
            v_mul_u32_u24 v14, 1280, v14
            v_lshl_add_u32 v14, v13, 5, v14
            v_and_b32 v13, 16, v12
            v_add_u32 v{8+k}, v13, v14""")
            g.vmem(f"buffer_load_dwordx4 {vr(16+4*k,4)}, v{8+k}, s[8:11], 0 offen")
        g(f"""v_lshrrev_b32 v12, 4, v1
        v_lshlrev_b32 v12, 9, v12
        v_lshl_add_u32 v10, v15, 4, v12
        s_mul_i32 s33, s25, {PART}
        v_lshl_add_u32 v11, v0, 4, s33""")
    g(f"s_cmp_ge_u32 s24, 4\ns_cbranch_scc1 {LA}")
    st0=g.state(); stamp(g,11)
    g("""s_and_b32 s33, s22, 7
    s_mul_i32 s33, s33, 3
    s_lshr_b32 s33, s33, 1
    s_and_b32 s34, s23, 3
    s_mul_i32 s34, s34, 3
    s_add_u32 s33, s33, s34
    s_sub_u32 s34, s33, 12
    s_cmp_ge_u32 s33, 12
    s_cselect_b32 s35, s34, s33""")
    if "norot3" in OPT: g("s_mov_b32 s35, 0")
    if "rot2" in OPT: g("s_add_u32 s35, s22, s23\ns_and_b32 s35, s35, 1\ns_mul_i32 s35, s35, 6")
    if "rot4" in OPT: g("s_add_u32 s35, s22, s23\ns_and_b32 s35, s35, 3\ns_mul_i32 s35, s35, 3")
    gaddr("s35")
    g(f"s_add_u32 s36, s16, {48*40960}\ns_add_u32 s37, s17, {12*8192}")
    SPJ=int(os.environ.get("SPJ","0"))
    def loads(j):
        if j<12: return ldh(j)+ldw(j)+[lambda: g("s_cmp_eq_u32 s38, s36\ns_cselect_b32 s38, s16, s38\ns_cselect_b32 s39, s17, s39" if j<11 else "s_mov_b32 s38, s36\ns_mov_b32 s39, s37")]
        o=ldw(j) if j<17 else []
        for q in range(12,17):
            if max(q,SPJ+LKA)==j: o+=ldh(q)
        return o
    if "eb" not in OPT: w3()
    g.lwait0()
    NPRE=int(os.environ.get("NPRE","0")); VAJ=int(os.environ.get("VAJ","0"))
    stamp(g,10); g("s_nop 0" if "eb" in OPT else "s_barrier"); stamp(g,1)
    for j in range(LKA):
        VAK=int(os.environ.get("VAK","-1"))
        for q,op in enumerate(loads(j)):
            if j==0 and q==VAK: g("v_mov_b32 v2, 0"); g.vwait(stg[2]); arrive(2,2,3)
            op()
        if j==VAJ and VAK<0: g("v_mov_b32 v2, 0"); g.vwait(stg[2]); arrive(2,2,3)
    if "ts" in OPT: g("s_mov_b32 s93, 0")
    for j in range(17):
        if j>=12:
            g.vwait(to[j,3]); chk(j); g(f"s_cbranch_vccnz RT_{j}\nRTB_{j}:")
            if j==12: stamp(g,6); rstamp(g,53)
        if j==max(12-LKA,SPJ): stamp(g,5); rstamp(g,54)
        mm(j,loads(j+LKA))
        if j in (0,5): stamp(g,2+j//5)
        if j==13: xres()
        if j==15: g("v_mov_b32 v2, 40960"); spin(3,2,3,4)
    g("s_nop 7")
    stamp(g,7)
    if "ts" in OPT: g("v_writelane_b32 v25, s93, 52")
    for f in range(20): g.ds(f"ds_write_b128 v11, {vr(ACC+4*f,4)} offset:{f*1024}")
    g.vwait0(); g(f"s_branch {LR}")
    for q in range(12,17): retry(q)
    g(f"{LA}:")
    g.restore(st0)
    if "prio" in OPT: g("s_setprio 1")
    g(f"""v_lshrrev_b32 v2, 5, v0
    v_and_b32 v3, 31, v0
    s_lshl_b32 s31, s27, 2
    s_add_u32 s31, s31, s25
    s_mul_i32 s33, s31, {QKV_TB}
    s_add_u32 s33, s33, s30
    v_lshlrev_b32 v4, 3, v3
    v_lshl_add_u32 v5, v2, 9, v4""")
    for hh,q in ((0,16),(1,72)):
        g.vmem(f"buffer_load_dwordx2 {vr(q,2)}, v5, s[72:75], s33 offen offset:{1280*hh}")
        g.vmem(f"buffer_load_dwordx2 {vr(q+2,2)}, v5, s[72:75], s33 offen offset:{1280*hh+256}")
        qtok=g.vmem(f"buffer_load_dwordx2 {vr(q+4,2)}, v4, s[72:75], s33 offen offset:{1280*hh+1024}")
    if "eb" not in OPT: g("s_barrier")
    g("v_lshlrev_b32 v6, 2, v2\nv_sub_u32 v6, v3, v6\nv_mov_b32 v7, 0xffff\nv_mov_b32 v13, 0xffff0000")
    for r in range(16): g(f"v_cmp_le_i32 s[{40+2*r}:{41+2*r}], {8*(r//4)+r%4}, v6")
    for k in range(8):
        g(f"v_cndmask_b32 v14, 0, v7, s[{40+4*k}:{41+4*k}]\nv_cndmask_b32 v15, 0, v13, s[{42+4*k}:{43+4*k}]\nv_or_b32 v{64+k}, v14, v15")
    g(f"s_mul_i32 s34, s25, {BS}\nv_cmp_lt_u32 vcc, 31, v0")
    KF=[248,32,38]
    def setup(hh):
        g(f"""v_lshrrev_b32 v6, 1, v3
        v_and_b32 v7, 1, v3
        v_lshlrev_b32 v7, 3, v7
        v_add_u32 v7, s34, v7""")
        for (d,expr) in ((10,f"v_lshl_add_u32 v13, v2, 1, {5*hh}"),(11,"v_add_u32 v13, 1, v13"),(12,f"v_mov_b32 v13, {5*hh+4}")):
            g(expr)
            g(f"""v_and_b32 v14, 7, v13
            v_lshlrev_b32 v14, 1, v14
            v_xor_b32 v14, v14, v6
            v_lshl_add_u32 v14, v14, 4, v7
            v_lshl_add_u32 v{d}, v13, 8, v14""")
        g(f"""s_add_u32 s35, s34, 2560
        v_mov_b32 v13, s35
        v_cndmask_b32 v12, v12, v13, vcc""")
    def setup2(hh):
        return f"""v_bfe_u32 v6, v0, 4, 1
        v_and_b32 v7, 3, v0
        v_lshl_add_u32 v6, v6, 2, v7
        v_add_u32 v7, {5*hh}, v6
        v_and_b32 v4, 7, v7
        v_lshlrev_b32 v4, 1, v4
        v_bfe_u32 v5, v0, 3, 1
        v_lshl_add_u32 v5, v2, 1, v5
        v_xor_b32 v4, v4, v5
        v_lshlrev_b32 v4, 4, v4
        v_bfe_u32 v5, v0, 2, 1
        v_lshl_add_u32 v4, v5, 3, v4
        v_cmp_lt_u32 s[36:37], 4, v6
        v_lshlrev_b32 v7, 8, v7
        v_mov_b32 v5, 2560
        s_add_u32 s35, s34, {VOFF}
        v_cndmask_b32 v7, v7, v5, s[36:37]
        v_add3_u32 v28, v7, v4, s35
        v_xor_b32 v29, 64, v28
        v_xor_b32 v30, 128, v28
        v_xor_b32 v31, 192, v28
        s_mul_i32 s33, s28, 2560
        v_lshlrev_b32 v6, 4, v3
        v_lshl_add_u32 v6, v2, 9, v6
        s_mul_i32 s35, s31, {HO_TB}
        s_add_u32 s33, s33, s35
        s_add_u32 s33, s33, {192*512}
        v_add_u32 v15, s33, v6""".split("\n")[:(28,21)[hh]]
    setup(0)
    g("v_mov_b32 v22, 0\nv_mov_b32 v6, 0xf149\nv_mov_b32 v56, 0x3f803f80\nv_mov_b32 v57, 0\nv_mov_b32 v27, 0\nv_cndmask_b32 v56, v56, v57, vcc")
    g.vwait(stg[2]); arrive(1,22,26); g.vwait(qtok)
    g("v_cndmask_b32 v20, v20, v6, vcc\nv_cndmask_b32 v21, v21, v22, vcc\nv_cndmask_b32 v76, v76, v6, vcc\nv_cndmask_b32 v77, v77, v22, vcc")
    spin(1,22,6,4); stamp(g,1)
    orders=([0,8,1,2,3,4,5,6,7],[1,2,0,8,3,4,5,6,7]); kt={}; pos={}; PER=int(os.environ.get("PER","6"))
    def kread(hh,i):
        if i>=9: return
        t=orders[hh][i]; k=KF[i%3]
        g.ds(f"ds_read_b64 {vr(k,2)}, v10 offset:{t*BS}"); g.ds(f"ds_read_b64 {vr(k+2,2)}, v11 offset:{t*BS}")
        kt[hh,i]=g.ds(f"ds_read_b64 {vr(k+4,2)}, v12 offset:{t*BS}")
    def mx(t,first):
        b=S+16*t; o=[]
        for k in range(0,16,2):
            a=f"v{13+(k//2)%2}"
            if first and k<4: o.append(f"v_max_f32 {a}, v{b+k}, v{b+k+1}")
            else: o.append(f"v_max3_f32 {a}, v{b+k}, v{b+k+1}, {a}")
        return o
    def sw(a,b): return [f"v_permlane32_swap_b32 v{a}, v{b}",f"v_permlane32_swap_b32 v{a+1}, v{b+1}"]
    def norm(hh):
        o=[f"v_rcp_f32 v254, v{O+12}\ns_nop 0"]
        for gq in range(3):
            r=O+4*gq; d=((58,60,240),(242,244,62))[hh][gq]
            o+=[f"v_mul_f32 v{r+k}, v{r+k}, v254" for k in range(4)]
            o+=[f"v_cvt_pk_bf16_f32 v{d}, v{r}, v{r+1}",f"v_cvt_pk_bf16_f32 v{d+1}, v{r+2}, v{r+3}"]
        if hh==0: o+=sw(58,60)+["buffer_store_dwordx4 v[58:61], v15, s[76:79], 0 offen sc1"]
        else: o+=sw(242,244)+sw(246,62)+sw(240,244)+["buffer_store_dwordx4 v[240:243], v15, s[76:79], 0 offen offset:1024 sc1",
            "s_mov_b32 exec_lo, 0\nbuffer_store_dwordx4 v[244:247], v15, s[76:79], 0 offen offset:1536 sc1\ns_mov_b32 exec_lo, -1"]
        return o
    VF=[32,36,40,44,48,52]; vt={}
    seq=[(t,m) for t in [1,2,3,4,5,6,7,8,0] for m in range(2)]
    def vread(i):
        if i>=18: return
        t,m=seq[i]; r=VF[i%6]
        g.ds(f"ds_read_b64_tr_b16 {vr(r,2)}, v{28+2*m} offset:{t*BS}")
        vt[i]=g.ds(f"ds_read_b64_tr_b16 {vr(r+2,2)}, v{29+2*m} offset:{t*BS}")
    def pv(i):
        t,m=seq[i]; g.lwait(vt[i])
        g(f"v_mfma_f32_32x32x16_bf16 {vr(O,16)}, {vr(VF[i%6],4)}, {vr(S+16*t+8*m,4)}, {'0' if i==0 else vr(O,16)}"); pos['pv',i]=len(g.L)
        vread(i+6)
    def item(hh,Q):
        order=orders[hh]; q=[(o,None) for o in setup2(hh)]; first=True
        for t in order:
            if t==0:
                if hh==1: q+=[(o,('pv',17)) for o in norm(0)]
                continue
            if t==8: q+=[(f"v_cndmask_b32 v{S+128+r}, v{S+r}, v{S+128+r}, s[{40+2*r}:{41+2*r}]",(hh,8)) for r in range(16)]
            q+=[(o,(hh,t)) for o in mx(t,first)]; first=False
        def pop(n,force=False):
            while n>0 and q:
                o,d=q[0]
                if d is not None:
                    if d not in pos: return
                    lack=12-(len(g.L)-pos[d])
                    if lack>0:
                        if not force: return
                        g(f"s_nop {min(lack,8)-1}")
                        if lack>8: g(f"s_nop {lack-9}")
                        pos[d]=-99
                g(o); q.pop(0); n-=1
        for i in range(9):
            t=order[i]; k=KF[i%3]
            if hh==1 and i<2: pv(15+2*i); pop(PER)
            g.lwait(kt[hh,i])
            g(f"v_mfma_f32_32x32x16_bf16 {vr(S+16*t,16)}, {vr(k,4)}, {vr(Q,4)}, 0"); pop(PER)
            if hh==1 and i==0: pv(16); pop(PER)
            g(f"v_mfma_f32_32x32x8bf16_1k {vr(S+16*t,16)}, {vr(k+4,2)}, {vr(Q+4,2)}, {vr(S+16*t,16)}"); pos[hh,t]=len(g.L)
            kread(hh,i+3)
            if i==8:
                if hh==0: spin(2,22,6,4)
                for x in range(6): vread(x)
            pop(PER if i>5 else PER-1)
        if "ts2" in OPT: stamp(g,10+3*hh)
        pop(99,True)
        g("""v_max_f32 v13, v13, v14
        v_mov_b32 v14, v13
        s_nop 1
        v_permlane32_swap_b32 v13, v14
        v_max_f32 v5, v13, v14
        v_cvt_pk_bf16_f32 v13, -v5, -v5
        v_and_b32 v13, 0xffff0000, v13
        v_sub_f32 v13, -v5, v13
        v_cvt_pk_bf16_f32 v26, -v5, v13
        s_nop 1""")
        def sub(t): g(f"v_mfma_f32_32x32x8bf16_1k {vr(S+16*t,16)}, v[56:57], v[26:27], {vr(S+16*t,16)}")
        sub(1); sub(2)
        if hh==0: setup(1)
        else: g("s_nop 7\ns_nop 3")
        if "ts2" in OPT: stamp(g,11+3*hh)
        for i in range(16):
            t,m=seq[i]; b=S+16*t+8*m
            for k in range(8):
                g(f"v_exp_f32 v{b+k}, v{b+k}")
                if k==1 and i>0: pv(i-1)
                if k==3 and hh==0 and i>=13: kread(1,i-13)
                if k==5 and m==0 and t+2<=8: sub(t+2)
            for k in range(4): g(f"v_cvt_pk_bf16_f32 v{b+k}, v{b+2*k}, v{b+2*k+1}")
            if t==8:
                for k in range(4):
                    b=S+128+8*m+k
                    g(f"v_and_b32 v{b+4}, v{64+4*m+k}, v{b}\nv_xor_b32 v{S+8*m+k}, v{b+4}, v{b}\nv_mov_b32 v{b}, v{b+4}")
        g("s_nop 1")
        if "ts2" in OPT: stamp(g,12+3*hh)
        if hh==1:
            for i in (15,16,17): pv(i)
            g("s_nop 7\ns_nop 3"); g("\n".join(norm(1)))
        stamp(g,2+hh)
    for i in range(3): kread(0,i)
    item(0,16); item(1,72)
    rstamp(g,50); g("v_mov_b32 v7, 40960\ns_setprio 0"); arrive(3,7,6)
    if "ts" in OPT: g.vwait0(); rstamp(g,51)
    stamp(g,5); xres(); g.vwait0()
    g(f"{LR}:")
    g.lwait0(); g("s_barrier"); stamp(g,8)
    g("v_add_u32 v11, 40960, v10")
    def red(k):
        for w in range(4):
            for h in range(2): g(f"ds_read_b128 {vr(32+8*w+4*h,4)}, v{10+w//2} offset:{(w%2)*PART+256*h+16384*k}")
        for w in range(1,4):
            g(f"s_waitcnt lgkmcnt({6-2*w})")
            for q in range(0,8,2): g(f"v_pk_add_f32 {vr(32+q,2)}, {vr(32+q,2)}, {vr(32+8*w+q,2)}")
        for q in range(4):
            x=16+4*k+q
            g(f"v_lshlrev_b32 v28, 16, v{x}\nv_and_b32 v29, 0xffff0000, v{x}\nv_pk_add_f32 {vr(32+2*q,2)}, {vr(32+2*q,2)}, v[28:29]")
            g(f"v_cvt_pk_bf16_f32 v{x}, v{32+2*q}, v{32+2*q+1}")
        g(f"buffer_store_dwordx4 {vr(16+4*k,4)}, v{8+k}, s[12:15], 0 offen{' sc1' if 'osc1' in OPT else ''}")
    red(0)
    g("s_cmp_ge_u32 s24, 2\ns_cbranch_scc1 RED_DONE"); red(1); g("RED_DONE:")
    stamp(g,9); rstamp(g,63); stamp_store(g,1)
```

```python
from gfw import *
S=96; O=80; VOFF=36864; BS=3072
ACC=176; NST=4; FR=32; CNT=2560+64; PART=20480
AMAP="s_and_b32 s28, s47, 1\ns_lshl_b32 s46, s46, 1\ns_add_u32 s28, s28, s46\ns_lshr_b32 s27, s47, 1"
def k23_body(g):
    stamp_init(g,25); rstamp(g,62); stamp(g,0)
    g(f"""s_load_dwordx2 s[18:19], s[0:1], 72
    s_load_dwordx2 s[4:5], s[0:1], 0
    s_load_dwordx2 s[20:21], s[0:1], 56""")
    codepf(g,88,"parallel_sum__sliding_block__glu_gated_bilinear__prompt_kernel","B")
    g(f"""v_mov_b32 v1, v0
    v_lshrrev_b32 v2, 6, v0
    v_and_b32 v0, 63, v0
    v_readfirstlane_b32 s24, v2
    s_and_b32 s46, s2, 7
    s_lshr_b32 s47, s2, 3
    s_lshr_b32 s27, s46, 1
    s_lshl_b32 s27, s27, 2
    s_and_b32 s33, s47, 3
    s_add_u32 s27, s27, s33
    s_and_b32 s28, s46, 1
    s_lshl_b32 s28, s28, 3
    s_lshr_b32 s33, s47, 2
    s_add_u32 s28, s28, s33
    s_lshr_b32 s23, s28, 1
    s_and_b32 s22, s28, 1
    s_lshl_b32 s33, s27, 1
    s_add_u32 s22, s22, s33
    s_and_b32 s25, s24, 3
    {"" if "loc" in OPT else AMAP}
    v_lshrrev_b32 v2, 4, v0
    v_lshlrev_b32 v3, 1, v2
    v_and_b32 v4, 15, v0
    v_xor_b32 v3, v3, v4
    v_lshlrev_b32 v3, 4, v3
    v_lshl_add_u32 v8, v2, 8, v3
    v_xor_b32 v9, 0x80, v8
    s_lshl_b32 s29, s27, 2
    s_sub_u32 s29, s29, 8
    s_mul_i32 s30, s28, 2560""")
    def w3():
        g(f"""v_lshrrev_b32 v12, 4, v1
    v_mul_u32_u24 v12, {BS}, v12
    v_and_b32 v13, 15, v1
    v_lshl_add_u32 v12, v13, 4, v12
    v_mov_b32 v16, 0x3f803f80
    v_mov_b32 v17, v16
    v_mov_b32 v18, v16
    v_mov_b32 v19, v16
    v_subrev_u32 v13, 192, v1
    v_mul_u32_u24 v14, {BS}, v13
    v_add_u32 v20, s29, v13
    v_mov_b32 v21, 0x3f80
    v_cmp_gt_i32 vcc, 0, v20
    s_cmp_eq_u32 s24, 3
    s_cbranch_scc1 W3_INIT
    ds_write_b128 v12, v[16:19] offset:{VOFF+2560}
    s_branch W3_DONE
    W3_INIT:
    v_cndmask_b32 v20, 0, v21, vcc
    v_mov_b32 v21, 0
    s_mov_b64 exec, 0xfff
    ds_write_b64 v14, v[20:21] offset:2560
    ds_write_b32 v14, v21 offset:{CNT}
    v_mov_b32 v14, 40960
    ds_write_b32 v14, v21 offset:40960
    s_mov_b64 exec, -1
    W3_DONE:""")
    if "prio0" in OPT: g("s_cmp_lt_u32 s24, 4\ns_cbranch_scc1 P0_SK\ns_setprio 1\nP0_SK:")
    if "eb" in OPT: g("s_cmp_ge_u32 s24, 4\ns_cbranch_scc1 W3_DONE"); w3()
    g("s_waitcnt lgkmcnt(0)")
    if "eb" in OPT: g("s_barrier")
    stamp(g,4); srd(g,72,"s18","s19",None,64*QKV_TB)
    stg={}
    g(f"""s_cmp_lt_u32 s24, 4
    s_cselect_b32 s34, 40960, 0
    s_cselect_b32 s35, {12*BS}, 0
    s_add_u32 s34, s34, s30
    s_add_u32 s34, s34, 40960
    s_mul_i32 s33, s25, {BS}
    s_add_u32 s35, s35, s33
    s_add_i32 s36, s25, s29""")
    for j in range(3):
        g(f"""s_add_u32 m0, s35, {4*j*BS}
        s_add_i32 s33, s36, {4*j}
        s_max_i32 s33, s33, 0
        s_mul_i32 s33, s33, {QKV_TB}
        s_add_u32 s33, s33, s34""")
        g.vmem(f"buffer_load_dwordx4 v8, s[72:75], s33 offen lds")
        g.vmem(f"buffer_load_dwordx4 v9, s[72:75], s33 offen offset:1024 lds")
        g("s_mov_b32 exec_hi, 0")
        stg[j]=g.vmem(f"buffer_load_dwordx4 v8, s[72:75], s33 offen offset:2048 lds")
        g("s_mov_b32 exec_hi, -1")
    srd(g,76,"s18","s19",HO_OFF,64*HO_TB)
    g(f"s_mul_i32 s33, s22, {2*HO_TB}\ns_add_u32 s33, s33, {HO_OFF}")
    srd(g,80,"s18","s19","s33",2*HO_TB)
    srd(g,84,"s18","s19",W2_OFF,68*40*1024)
    g(f"s_mul_i32 s33, s22, {64*1280}\ns_mul_i32 s34, s23, 160\ns_add_u32 s33, s33, s34")
    srd(g,8,"s4","s5","s33",63*1280+160); srd(g,12,"s20","s21","s33",63*1280+160)
    def coff(k): return 40960 if k==3 else CNT+k*BS
    def arrive(k,z,t): g(f"v_mov_b32 v{t}, 1\ns_mov_b64 exec, 1"); g.ds(f"ds_add_u32 v{z}, v{t} offset:{coff(k)}"); g("s_mov_b64 exec, -1")
    def spin(k,z,t,n):
        L=g.label("SP")
        g(f"""s_mov_b32 s33, 0x200000
        {L}:
        ds_read_b32 v{t}, v{z} offset:{coff(k)}
        s_sub_u32 s33, s33, 1
        s_cbranch_scc1 {L}_E
        s_waitcnt lgkmcnt(0)
        v_readfirstlane_b32 s35, v{t}
        s_cmp_lt_u32 s35, {n}
        s_cbranch_scc1 {L}
        {L}_E:"""); g.lwait0()
    LA=g.label("ATT"); LR=g.label("RED")
    def gaddr(j0):
        g(f"""v_lshlrev_b32 v4, 4, v0
        v_add_u32 v5, 4096, v4
        v_lshrrev_b32 v2, 4, v0
        v_and_b32 v3, 15, v0
        v_lshlrev_b32 v6, 4, v3
        v_lshl_add_u32 v6, v2, 9, v6
        v_add_u32 v7, {HO_TB}, v6
        s_mul_i32 s16, s25, 40960
        s_mul_i32 s33, s23, 5120
        s_add_u32 s16, s16, s33
        s_lshl_b32 s17, s25, 11
        s_mul_i32 s38, {j0}, {4*40960}
        s_add_u32 s38, s38, s16
        s_lshl_b32 s39, {j0}, 13
        s_add_u32 s39, s39, s17""")
    tk={}; to={}; LKA=int(os.environ.get("LKA","3"))
    def ldw(j):
        b=FR+36*(j%NST); o=[]
        for nb in range(5): o.append(lambda nb=nb: tk.__setitem__((j,nb),g.vmem(f"buffer_load_dwordx4 {vr(b+4*nb,4)}, v{4+nb//4}, s[84:87], s38 offen offset:{(nb%4)*1024}{' nt' if 'ntw2' in OPT else ''}"+(f"\ns_add_u32 s38, s38, {4*40960}" if nb==4 else ""))))
        return o
    def oreg(j,tg): return FR+36*(j%NST)+20+4*tg
    def ldh(j):
        o=[]
        for tg in range(4): o.append(lambda tg=tg: to.__setitem__((j,tg),g.vmem(f"buffer_load_dwordx4 {vr(oreg(j,tg),4)}, v{6+tg//2}, s[80:83], s39 offen offset:{(tg%2)*256}{' nt' if 'nth' in OPT else ''}"+("\ns_add_u32 s39, s39, 8192" if tg==3 else ""))))
        return o
    def chk(j): g(f"v_max3_u32 v2, v{oreg(j,0)}, v{oreg(j,1)}, v{oreg(j,2)}\nv_max_u32 v2, v2, v{oreg(j,3)}\nv_cmp_eq_u32 vcc, -1, v2\ns_nop 3")
    def retry(q):
        g(f"RT_{q}:\ns_mov_b32 s33, 0x20000\nRTL_{q}:\ns_waitcnt vmcnt(0)\ns_mov_b32 s34, 0")
        for r in range(q,min(17,q+LKA)):
            chk(r); g(f"s_cbranch_vccz RTS_{q}_{r}\ns_mov_b32 s34, 1\ns_add_u32 s35, s37, {(r-12)*8192}")
            for tg in range(4): g(f"buffer_load_dwordx4 {vr(oreg(r,tg),4)}, v{6+tg//2}, s[80:83], s35 offen offset:{(tg%2)*256} sc1")
            g(f"RTS_{q}_{r}:")
        if "ts" in OPT: g(f"s_add_u32 s93, s93, s34")
        g(f"s_sub_u32 s33, s33, 1\ns_cselect_b32 s34, 0, s34\ns_cmp_lg_u32 s34, 0\ns_cbranch_scc1 RTL_{q}\ns_waitcnt vmcnt(0)\ns_branch RTB_{q}")
    wp=[]; wn=[0]
    def mm(j,ops):
        b=FR+36*(j%NST); per=-(-len(ops)//10)
        for x in range(20):
            nb,tg=x//4,x%4
            g.vwait(max(tk[j,nb],to[j,tg])); a=ACC+4*(nb*4+tg)
            g(f"v_mfma_f32_16x16x32_bf16 {vr(a,4)}, {vr(b+4*nb,4)}, {vr(oreg(j,tg),4)}, {'0' if j==0 else vr(a,4)}")
            if j==16 and "ilw" in OPT:
                wp.append(len(g.L))
                for _ in range(2):
                    if len(g.L)-wp[wn[0]]>=9: g.ds(f"ds_write_b128 v11, {vr(ACC+4*wn[0],4)} offset:{wn[0]*1024}"); wn[0]+=1
            if x%2==1 and "noil" not in OPT:
                for _ in range(per):
                    if ops: ops.pop(0)()
        while ops: ops.pop(0)()
    def xres():
        for k in range(2):
            g(f"""v_add_u32 v12, {512*k}, v1
            v_lshrrev_b32 v13, 7, v12
            v_bfe_u32 v14, v12, 5, 2
            v_and_b32 v15, 15, v12
            v_lshl_add_u32 v14, v14, 4, v15
            v_mul_u32_u24 v14, 1280, v14
            v_lshl_add_u32 v14, v13, 5, v14
            v_and_b32 v13, 16, v12
            v_add_u32 v{8+k}, v13, v14""")
            g.vmem(f"buffer_load_dwordx4 {vr(16+4*k,4)}, v{8+k}, s[8:11], 0 offen")
        g(f"""v_lshrrev_b32 v12, 4, v1
        v_lshlrev_b32 v12, 9, v12
        v_lshl_add_u32 v10, v15, 4, v12
        s_mul_i32 s33, s25, {PART}
        v_lshl_add_u32 v11, v0, 4, s33""")
    g(f"s_cmp_ge_u32 s24, 4\ns_cbranch_scc1 {LA}")
    st0=g.state(); stamp(g,11)
    g("""s_and_b32 s33, s22, 7
    s_mul_i32 s33, s33, 3
    s_lshr_b32 s33, s33, 1
    s_and_b32 s34, s23, 3
    s_mul_i32 s34, s34, 3
    s_add_u32 s33, s33, s34
    s_sub_u32 s34, s33, 12
    s_cmp_ge_u32 s33, 12
    s_cselect_b32 s35, s34, s33""")
    if "norot3" in OPT: g("s_mov_b32 s35, 0")
    if "rot2" in OPT: g("s_add_u32 s35, s22, s23\ns_and_b32 s35, s35, 1\ns_mul_i32 s35, s35, 6")
    if "rot4" in OPT: g("s_add_u32 s35, s22, s23\ns_and_b32 s35, s35, 3\ns_mul_i32 s35, s35, 3")
    gaddr("s35")
    g(f"s_add_u32 s36, s16, {48*40960}\ns_add_u32 s37, s17, {12*8192}")
    SPJ=int(os.environ.get("SPJ","0"))
    def loads(j):
        if j<12: return ldh(j)+ldw(j)+[lambda: g("s_cmp_eq_u32 s38, s36\ns_cselect_b32 s38, s16, s38\ns_cselect_b32 s39, s17, s39" if j<11 else "s_mov_b32 s38, s36\ns_mov_b32 s39, s37")]
        o=ldw(j) if j<17 else []
        for q in range(12,17):
            if max(q,SPJ+LKA)==j: o+=ldh(q)
        return o
    if "eb" not in OPT: w3()
    g.lwait0()
    NPRE=int(os.environ.get("NPRE","0")); VAJ=int(os.environ.get("VAJ","0"))
    stamp(g,10); g("s_nop 0" if "eb" in OPT else "s_barrier"); stamp(g,1)
    for j in range(LKA):
        VAK=int(os.environ.get("VAK","-1"))
        for q,op in enumerate(loads(j)):
            if j==0 and q==VAK: g("v_mov_b32 v2, 0"); g.vwait(stg[2]); arrive(2,2,3)
            op()
        if j==VAJ and VAK<0: g("v_mov_b32 v2, 0"); g.vwait(stg[2]); arrive(2,2,3)
    if "ts" in OPT: g("s_mov_b32 s93, 0")
    for j in range(17):
        if j>=12:
            g.vwait(to[j,3]); chk(j); g(f"s_cbranch_vccnz RT_{j}\nRTB_{j}:")
            if j==12: stamp(g,6); rstamp(g,53)
        if j==max(12-LKA,SPJ): stamp(g,5); rstamp(g,54)
        mm(j,loads(j+LKA))
        if j in (0,5): stamp(g,2+j//5)
        if j==13: xres()
        if j==15: g("v_mov_b32 v2, 40960"); spin(3,2,3,4)
    g("s_nop 7")
    stamp(g,7)
    if "ts" in OPT: g("v_writelane_b32 v25, s93, 52")
    for f in range(wn[0],20): g.ds(f"ds_write_b128 v11, {vr(ACC+4*f,4)} offset:{f*1024}")
    g.vwait0(); g(f"s_branch {LR}")
    for q in range(12,17): retry(q)
    g(f"{LA}:")
    g.restore(st0)
    if "prio" in OPT: g("s_setprio 1")
    g(f"""v_lshrrev_b32 v2, 5, v0
    v_and_b32 v3, 31, v0
    s_lshl_b32 s31, s27, 2
    s_add_u32 s31, s31, s25
    s_mul_i32 s33, s31, {QKV_TB}
    s_add_u32 s33, s33, s30
    v_lshlrev_b32 v4, 3, v3
    v_lshl_add_u32 v5, v2, 9, v4""")
    for hh,q in ((0,16),(1,72)):
        g.vmem(f"buffer_load_dwordx2 {vr(q,2)}, v5, s[72:75], s33 offen offset:{1280*hh}")
        g.vmem(f"buffer_load_dwordx2 {vr(q+2,2)}, v5, s[72:75], s33 offen offset:{1280*hh+256}")
        qtok=g.vmem(f"buffer_load_dwordx2 {vr(q+4,2)}, v4, s[72:75], s33 offen offset:{1280*hh+1024}")
    if "eb" not in OPT: g("s_barrier")
    g("v_lshlrev_b32 v6, 2, v2\nv_sub_u32 v6, v3, v6\nv_mov_b32 v7, 0xffff\nv_mov_b32 v13, 0xffff0000")
    for r in range(16): g(f"v_cmp_le_i32 s[{40+2*r}:{41+2*r}], {8*(r//4)+r%4}, v6")
    for k in range(8):
        g(f"v_cndmask_b32 v14, 0, v7, s[{40+4*k}:{41+4*k}]\nv_cndmask_b32 v15, 0, v13, s[{42+4*k}:{43+4*k}]\nv_or_b32 v{64+k}, v14, v15")
    g(f"s_mul_i32 s34, s25, {BS}\nv_cmp_lt_u32 vcc, 31, v0")
    KF=[248,32,38]
    def setup(hh):
        g(f"""v_lshrrev_b32 v6, 1, v3
        v_and_b32 v7, 1, v3
        v_lshlrev_b32 v7, 3, v7
        v_add_u32 v7, s34, v7""")
        for (d,expr) in ((10,f"v_lshl_add_u32 v13, v2, 1, {5*hh}"),(11,"v_add_u32 v13, 1, v13"),(12,f"v_mov_b32 v13, {5*hh+4}")):
            g(expr)
            g(f"""v_and_b32 v14, 7, v13
            v_lshlrev_b32 v14, 1, v14
            v_xor_b32 v14, v14, v6
            v_lshl_add_u32 v14, v14, 4, v7
            v_lshl_add_u32 v{d}, v13, 8, v14""")
        g(f"""s_add_u32 s35, s34, 2560
        v_mov_b32 v13, s35
        v_cndmask_b32 v12, v12, v13, vcc""")
    def setup2(hh):
        return f"""v_bfe_u32 v6, v0, 4, 1
        v_and_b32 v7, 3, v0
        v_lshl_add_u32 v6, v6, 2, v7
        v_add_u32 v7, {5*hh}, v6
        v_and_b32 v4, 7, v7
        v_lshlrev_b32 v4, 1, v4
        v_bfe_u32 v5, v0, 3, 1
        v_lshl_add_u32 v5, v2, 1, v5
        v_xor_b32 v4, v4, v5
        v_lshlrev_b32 v4, 4, v4
        v_bfe_u32 v5, v0, 2, 1
        v_lshl_add_u32 v4, v5, 3, v4
        v_cmp_lt_u32 s[36:37], 4, v6
        v_lshlrev_b32 v7, 8, v7
        v_mov_b32 v5, 2560
        s_add_u32 s35, s34, {VOFF}
        v_cndmask_b32 v7, v7, v5, s[36:37]
        v_add3_u32 v28, v7, v4, s35
        v_xor_b32 v29, 64, v28
        v_xor_b32 v30, 128, v28
        v_xor_b32 v31, 192, v28
        s_mul_i32 s33, s28, 2560
        v_lshlrev_b32 v6, 4, v3
        v_lshl_add_u32 v6, v2, 9, v6
        s_mul_i32 s35, s31, {HO_TB}
        s_add_u32 s33, s33, s35
        s_add_u32 s33, s33, {192*512}
        v_add_u32 v15, s33, v6""".split("\n")[:(28,21)[hh]]
    setup(0)
    g("v_mov_b32 v22, 0\nv_mov_b32 v6, 0xf149\nv_mov_b32 v56, 0x3f803f80\nv_mov_b32 v57, 0\nv_mov_b32 v27, 0\nv_cndmask_b32 v56, v56, v57, vcc")
    g.vwait(stg[2]); arrive(1,22,26); g.vwait(qtok)
    g("v_cndmask_b32 v20, v20, v6, vcc\nv_cndmask_b32 v21, v21, v22, vcc\nv_cndmask_b32 v76, v76, v6, vcc\nv_cndmask_b32 v77, v77, v22, vcc")
    spin(1,22,6,4); stamp(g,1)
    orders=([0,8,1,2,3,4,5,6,7],[1,2,0,8,3,4,5,6,7]); kt={}; pos={}; PER=int(os.environ.get("PER","6"))
    def kread(hh,i):
        if i>=9: return
        t=orders[hh][i]; k=KF[i%3]
        g.ds(f"ds_read_b64 {vr(k,2)}, v10 offset:{t*BS}"); g.ds(f"ds_read_b64 {vr(k+2,2)}, v11 offset:{t*BS}")
        kt[hh,i]=g.ds(f"ds_read_b64 {vr(k+4,2)}, v12 offset:{t*BS}")
    def mx(t,first):
        b=S+16*t; o=[]
        for k in range(0,16,2):
            a=f"v{13+(k//2)%2}"
            if first and k<4: o.append(f"v_max_f32 {a}, v{b+k}, v{b+k+1}")
            else: o.append(f"v_max3_f32 {a}, v{b+k}, v{b+k+1}, {a}")
        return o
    def sw(a,b): return [f"v_permlane32_swap_b32 v{a}, v{b}",f"v_permlane32_swap_b32 v{a+1}, v{b+1}"]
    def norm(hh):
        o=[f"v_rcp_f32 v254, v{O+12}\ns_nop 0"]
        for gq in range(3):
            r=O+4*gq; d=((58,60,240),(242,244,62))[hh][gq]
            o+=[f"v_mul_f32 v{r+k}, v{r+k}, v254" for k in range(4)]
            o+=[f"v_cvt_pk_bf16_f32 v{d}, v{r}, v{r+1}",f"v_cvt_pk_bf16_f32 v{d+1}, v{r+2}, v{r+3}"]
        if hh==0: o+=sw(58,60)+["buffer_store_dwordx4 v[58:61], v15, s[76:79], 0 offen sc1"]
        else: o+=sw(242,244)+sw(246,62)+sw(240,244)+["buffer_store_dwordx4 v[240:243], v15, s[76:79], 0 offen offset:1024 sc1",
            "s_mov_b32 exec_lo, 0\nbuffer_store_dwordx4 v[244:247], v15, s[76:79], 0 offen offset:1536 sc1\ns_mov_b32 exec_lo, -1"]
        return o
    VF=[32,36,40,44,48,52]; vt={}
    seq=[(t,m) for t in [1,2,3,4,5,6,7,8,0] for m in range(2)]
    def vread(i):
        if i>=18: return
        t,m=seq[i]; r=VF[i%6]
        g.ds(f"ds_read_b64_tr_b16 {vr(r,2)}, v{28+2*m} offset:{t*BS}")
        vt[i]=g.ds(f"ds_read_b64_tr_b16 {vr(r+2,2)}, v{29+2*m} offset:{t*BS}")
    def pv(i):
        t,m=seq[i]; g.lwait(vt[i])
        g(f"v_mfma_f32_32x32x16_bf16 {vr(O,16)}, {vr(VF[i%6],4)}, {vr(S+16*t+8*m,4)}, {'0' if i==0 else vr(O,16)}"); pos['pv',i]=len(g.L)
        vread(i+6)
    def item(hh,Q):
        order=orders[hh]; q=[(o,None) for o in setup2(hh)]; first=True
        for t in order:
            if t==0:
                if hh==1: q+=[(o,('pv',17)) for o in norm(0)]
                continue
            if t==8: q+=[(f"v_cndmask_b32 v{S+128+r}, v{S+r}, v{S+128+r}, s[{40+2*r}:{41+2*r}]",(hh,8)) for r in range(16)]
            q+=[(o,(hh,t)) for o in mx(t,first)]; first=False
        def pop(n,force=False):
            while n>0 and q:
                o,d=q[0]
                if d is not None:
                    if d not in pos: return
                    lack=12-(len(g.L)-pos[d])
                    if lack>0:
                        if not force: return
                        g(f"s_nop {min(lack,8)-1}")
                        if lack>8: g(f"s_nop {lack-9}")
                        pos[d]=-99
                g(o); q.pop(0); n-=1
        for i in range(9):
            t=order[i]; k=KF[i%3]
            if hh==1 and i<2: pv(15+2*i); pop(PER)
            g.lwait(kt[hh,i])
            g(f"v_mfma_f32_32x32x16_bf16 {vr(S+16*t,16)}, {vr(k,4)}, {vr(Q,4)}, 0"); pop(PER)
            if hh==1 and i==0: pv(16); pop(PER)
            g(f"v_mfma_f32_32x32x8bf16_1k {vr(S+16*t,16)}, {vr(k+4,2)}, {vr(Q+4,2)}, {vr(S+16*t,16)}"); pos[hh,t]=len(g.L)
            kread(hh,i+3)
            if i==8:
                if hh==0: spin(2,22,6,4)
                for x in range(6): vread(x)
            pop(PER if i>5 else PER-1)
        if "ts2" in OPT: stamp(g,10+3*hh)
        pop(99,True)
        g("""v_max_f32 v13, v13, v14
        v_mov_b32 v14, v13
        s_nop 1
        v_permlane32_swap_b32 v13, v14
        v_max_f32 v5, v13, v14
        v_cvt_pk_bf16_f32 v13, -v5, -v5
        v_and_b32 v13, 0xffff0000, v13
        v_sub_f32 v13, -v5, v13
        v_cvt_pk_bf16_f32 v26, -v5, v13
        s_nop 1""")
        def sub(t): g(f"v_mfma_f32_32x32x8bf16_1k {vr(S+16*t,16)}, v[56:57], v[26:27], {vr(S+16*t,16)}")
        sub(1); sub(2)
        if hh==0: setup(1)
        else: g("s_nop 7\ns_nop 3")
        if "ts2" in OPT: stamp(g,11+3*hh)
        for i in range(16):
            t,m=seq[i]; b=S+16*t+8*m
            for k in range(8):
                g(f"v_exp_f32 v{b+k}, v{b+k}")
                if k==1 and i>0: pv(i-1)
                if k==3 and hh==0 and i>=13: kread(1,i-13)
                if k==5 and m==0 and t+2<=8: sub(t+2)
            for k in range(4): g(f"v_cvt_pk_bf16_f32 v{b+k}, v{b+2*k}, v{b+2*k+1}")
            if t==8:
                for k in range(4):
                    b=S+128+8*m+k
                    g(f"v_and_b32 v{b+4}, v{64+4*m+k}, v{b}\nv_xor_b32 v{S+8*m+k}, v{b+4}, v{b}\nv_mov_b32 v{b}, v{b+4}")
        g("s_nop 1")
        if "ts2" in OPT: stamp(g,12+3*hh)
        if hh==1:
            for i in (15,16,17): pv(i)
            g("s_nop 7\ns_nop 3"); g("\n".join(norm(1)))
        stamp(g,2+hh)
    for i in range(3): kread(0,i)
    item(0,16); item(1,72)
    rstamp(g,50); g("v_mov_b32 v7, 40960\ns_setprio 0"); arrive(3,7,6)
    if "ts" in OPT: g.vwait0(); rstamp(g,51)
    stamp(g,5); xres(); g.vwait0()
    g(f"{LR}:")
    g.lwait0(); g("s_barrier"); stamp(g,8)
    g("v_add_u32 v11, 40960, v10")
    def red(k):
        for w in range(4):
            for h in range(2): g(f"ds_read_b128 {vr(32+8*w+4*h,4)}, v{10+w//2} offset:{(w%2)*PART+256*h+16384*k}")
        for w in range(1,4):
            g(f"s_waitcnt lgkmcnt({6-2*w})")
            for q in range(0,8,2): g(f"v_pk_add_f32 {vr(32+q,2)}, {vr(32+q,2)}, {vr(32+8*w+q,2)}")
        for q in range(4):
            x=16+4*k+q
            g(f"v_lshlrev_b32 v28, 16, v{x}\nv_and_b32 v29, 0xffff0000, v{x}\nv_pk_add_f32 {vr(32+2*q,2)}, {vr(32+2*q,2)}, v[28:29]")
            g(f"v_cvt_pk_bf16_f32 v{x}, v{32+2*q}, v{32+2*q+1}")
        g(f"buffer_store_dwordx4 {vr(16+4*k,4)}, v{8+k}, s[12:15], 0 offen{' sc1' if 'osc1' in OPT else ''}")
    red(0)
    g("s_cmp_ge_u32 s24, 2\ns_cbranch_scc1 RED_DONE"); red(1); g("RED_DONE:")
    stamp(g,9); rstamp(g,63); stamp_store(g,1)
```

```python
from gfw import *
S=96; O=80; VOFF=36864; BS=3072
ACC=176; NST=4; FR=32; CNT=2560+64; PART=20480
AMAP="s_and_b32 s28, s47, 1\ns_lshl_b32 s46, s46, 1\ns_add_u32 s28, s28, s46\ns_lshr_b32 s27, s47, 1"
def k23_body(g):
    stamp_init(g,25); rstamp(g,62); stamp(g,0)
    g(f"""s_load_dwordx2 s[18:19], s[0:1], 72
    s_load_dwordx2 s[4:5], s[0:1], 0
    s_load_dwordx2 s[20:21], s[0:1], 56""")
    codepf(g,88,"parallel_sum__sliding_block__glu_gated_bilinear__prompt_kernel","B")
    g(f"""v_mov_b32 v1, v0
    v_lshrrev_b32 v2, 6, v0
    v_and_b32 v0, 63, v0
    v_readfirstlane_b32 s24, v2
    s_and_b32 s46, s2, 7
    s_lshr_b32 s47, s2, 3
    s_lshr_b32 s27, s46, 1
    s_lshl_b32 s27, s27, 2
    s_and_b32 s33, s47, 3
    s_add_u32 s27, s27, s33
    s_and_b32 s28, s46, 1
    s_lshl_b32 s28, s28, 3
    s_lshr_b32 s33, s47, 2
    s_add_u32 s28, s28, s33
    s_lshr_b32 s23, s28, 1
    s_and_b32 s22, s28, 1
    s_lshl_b32 s33, s27, 1
    s_add_u32 s22, s22, s33
    s_and_b32 s25, s24, 3
    {"" if "loc" in OPT else AMAP}
    v_lshrrev_b32 v2, 4, v0
    v_lshlrev_b32 v3, 1, v2
    v_and_b32 v4, 15, v0
    v_xor_b32 v3, v3, v4
    v_lshlrev_b32 v3, 4, v3
    v_lshl_add_u32 v8, v2, 8, v3
    v_xor_b32 v9, 0x80, v8
    s_lshl_b32 s29, s27, 2
    s_sub_u32 s29, s29, 8
    s_mul_i32 s30, s28, 2560""")
    def w3():
        g(f"""v_lshrrev_b32 v12, 4, v1
    v_mul_u32_u24 v12, {BS}, v12
    v_and_b32 v13, 15, v1
    v_lshl_add_u32 v12, v13, 4, v12
    v_mov_b32 v16, 0x3f803f80
    v_mov_b32 v17, v16
    v_mov_b32 v18, v16
    v_mov_b32 v19, v16
    v_subrev_u32 v13, 192, v1
    v_mul_u32_u24 v14, {BS}, v13
    v_add_u32 v20, s29, v13
    v_mov_b32 v21, 0x3f80
    v_cmp_gt_i32 vcc, 0, v20
    s_cmp_eq_u32 s24, 3
    s_cbranch_scc1 W3_INIT
    ds_write_b128 v12, v[16:19] offset:{VOFF+2560}
    s_branch W3_DONE
    W3_INIT:
    v_cndmask_b32 v20, 0, v21, vcc
    v_mov_b32 v21, 0
    s_mov_b64 exec, 0xfff
    ds_write_b64 v14, v[20:21] offset:2560
    ds_write_b32 v14, v21 offset:{CNT}
    v_mov_b32 v14, 40960
    ds_write_b32 v14, v21 offset:40960
    s_mov_b64 exec, -1
    W3_DONE:""")
    g("s_cmp_lt_u32 s24, 4\ns_cbranch_scc1 P0_SK\ns_setprio 1\nP0_SK:")
    g("s_cmp_ge_u32 s24, 4\ns_cbranch_scc1 W3_DONE"); w3()
    g("s_waitcnt lgkmcnt(0)\ns_barrier")
    srd(g,72,"s18","s19",None,64*QKV_TB)
    stg={}
    g(f"""s_cmp_lt_u32 s24, 4
    s_cselect_b32 s34, 40960, 0
    s_cselect_b32 s35, {12*BS}, 0
    s_add_u32 s34, s34, s30
    s_add_u32 s34, s34, 40960
    s_mul_i32 s33, s25, {BS}
    s_add_u32 s35, s35, s33
    s_add_i32 s36, s25, s29""")
    for j in range(3):
        g(f"""s_add_u32 m0, s35, {4*j*BS}
        s_add_i32 s33, s36, {4*j}
        s_max_i32 s33, s33, 0
        s_mul_i32 s33, s33, {QKV_TB}
        s_add_u32 s33, s33, s34""")
        g.vmem(f"buffer_load_dwordx4 v8, s[72:75], s33 offen lds")
        g.vmem(f"buffer_load_dwordx4 v9, s[72:75], s33 offen offset:1024 lds")
        g("s_mov_b32 exec_hi, 0")
        stg[j]=g.vmem(f"buffer_load_dwordx4 v8, s[72:75], s33 offen offset:2048 lds")
        g("s_mov_b32 exec_hi, -1")
    srd(g,76,"s18","s19",HO_OFF,64*HO_TB)
    g(f"s_mul_i32 s33, s22, {2*HO_TB}\ns_add_u32 s33, s33, {HO_OFF}")
    srd(g,80,"s18","s19","s33",2*HO_TB)
    srd(g,84,"s18","s19",W2_OFF,68*40*1024)
    g(f"s_mul_i32 s33, s22, {64*1280}\ns_mul_i32 s34, s23, 160\ns_add_u32 s33, s33, s34")
    srd(g,8,"s4","s5","s33",63*1280+160); srd(g,12,"s20","s21","s33",63*1280+160)
    def coff(k): return 40960 if k==3 else CNT+k*BS
    def arrive(k,z,t): g(f"v_mov_b32 v{t}, 1\ns_mov_b64 exec, 1"); g.ds(f"ds_add_u32 v{z}, v{t} offset:{coff(k)}"); g("s_mov_b64 exec, -1")
    def spin(k,z,t,n):
        L=g.label("SP")
        g(f"""s_mov_b32 s33, 0x200000
        {L}:
        ds_read_b32 v{t}, v{z} offset:{coff(k)}
        s_sub_u32 s33, s33, 1
        s_cbranch_scc1 {L}_E
        s_waitcnt lgkmcnt(0)
        v_readfirstlane_b32 s35, v{t}
        s_cmp_lt_u32 s35, {n}
        s_cbranch_scc1 {L}
        {L}_E:"""); g.lwait0()
    LA=g.label("ATT"); LR=g.label("RED")
    def gaddr(j0):
        g(f"""v_lshlrev_b32 v4, 4, v0
        v_add_u32 v5, 4096, v4
        v_lshrrev_b32 v2, 4, v0
        v_and_b32 v3, 15, v0
        v_lshlrev_b32 v6, 4, v3
        v_lshl_add_u32 v6, v2, 9, v6
        v_add_u32 v7, {HO_TB}, v6
        s_mul_i32 s16, s25, 40960
        s_mul_i32 s33, s23, 5120
        s_add_u32 s16, s16, s33
        s_lshl_b32 s17, s25, 11
        s_mul_i32 s38, {j0}, {4*40960}
        s_add_u32 s38, s38, s16
        s_lshl_b32 s39, {j0}, 13
        s_add_u32 s39, s39, s17""")
    tk={}; to={}; LKA=int(os.environ.get("LKA","3"))
    def ldw(j):
        b=FR+36*(j%NST); o=[]
        for nb in range(5): o.append(lambda nb=nb: tk.__setitem__((j,nb),g.vmem(f"buffer_load_dwordx4 {vr(b+4*nb,4)}, v{4+nb//4}, s[84:87], s38 offen offset:{(nb%4)*1024}"+(f"\ns_add_u32 s38, s38, {4*40960}" if nb==4 else ""))))
        return o
    def oreg(j,tg): return FR+36*(j%NST)+20+4*tg
    def ldh(j):
        o=[]
        for tg in range(4): o.append(lambda tg=tg: to.__setitem__((j,tg),g.vmem(f"buffer_load_dwordx4 {vr(oreg(j,tg),4)}, v{6+tg//2}, s[80:83], s39 offen offset:{(tg%2)*256}"+("\ns_add_u32 s39, s39, 8192" if tg==3 else ""))))
        return o
    def chk(j): g(f"v_max3_u32 v2, v{oreg(j,0)}, v{oreg(j,1)}, v{oreg(j,2)}\nv_max_u32 v2, v2, v{oreg(j,3)}\nv_cmp_eq_u32 vcc, -1, v2\ns_nop 3")
    def retry(q):
        g(f"RT_{q}:\ns_mov_b32 s33, 0x20000\nRTL_{q}:\ns_waitcnt vmcnt(0)\ns_mov_b32 s34, 0")
        for r in range(q,min(17,q+LKA)):
            chk(r); g(f"s_cbranch_vccz RTS_{q}_{r}\ns_mov_b32 s34, 1\ns_add_u32 s35, s37, {(r-12)*8192}")
            for tg in range(4): g(f"buffer_load_dwordx4 {vr(oreg(r,tg),4)}, v{6+tg//2}, s[80:83], s35 offen offset:{(tg%2)*256} sc1")
            g(f"RTS_{q}_{r}:")
        if "ts" in OPT: g(f"s_add_u32 s93, s93, s34")
        g(f"s_sub_u32 s33, s33, 1\ns_cselect_b32 s34, 0, s34\ns_cmp_lg_u32 s34, 0\ns_cbranch_scc1 RTL_{q}\ns_waitcnt vmcnt(0)\ns_branch RTB_{q}")
    wp=[]; wn=[0]
    def mm(j,ops):
        b=FR+36*(j%NST); per=-(-len(ops)//10)
        for x in range(20):
            nb,tg=x//4,x%4
            g.vwait(max(tk[j,nb],to[j,tg])); a=ACC+4*(nb*4+tg)
            g(f"v_mfma_f32_16x16x32_bf16 {vr(a,4)}, {vr(b+4*nb,4)}, {vr(oreg(j,tg),4)}, {'0' if j==0 else vr(a,4)}")
            if j==16 and "ilw" in OPT:
                wp.append(len(g.L))
                for _ in range(2):
                    if len(g.L)-wp[wn[0]]>=9: g.ds(f"ds_write_b128 v11, {vr(ACC+4*wn[0],4)} offset:{wn[0]*1024}"); wn[0]+=1
            if x%2==1 and "noil" not in OPT:
                for _ in range(per):
                    if ops: ops.pop(0)()
        while ops: ops.pop(0)()
    def xres():
        for k in range(2):
            g(f"""v_add_u32 v12, {512*k}, v1
            v_lshrrev_b32 v13, 7, v12
            v_bfe_u32 v14, v12, 5, 2
            v_and_b32 v15, 15, v12
            v_lshl_add_u32 v14, v14, 4, v15
            v_mul_u32_u24 v14, 1280, v14
            v_lshl_add_u32 v14, v13, 5, v14
            v_and_b32 v13, 16, v12
            v_add_u32 v{8+k}, v13, v14""")
            g.vmem(f"buffer_load_dwordx4 {vr(16+4*k,4)}, v{8+k}, s[8:11], 0 offen")
        g(f"""v_lshrrev_b32 v12, 4, v1
        v_lshlrev_b32 v12, 9, v12
        v_lshl_add_u32 v10, v15, 4, v12
        s_mul_i32 s33, s25, {PART}
        v_lshl_add_u32 v11, v0, 4, s33""")
    g(f"s_cmp_ge_u32 s24, 4\ns_cbranch_scc1 {LA}")
    st0=g.state()
    g("""s_and_b32 s33, s22, 7
    s_mul_i32 s33, s33, 3
    s_lshr_b32 s33, s33, 1
    s_and_b32 s34, s23, 3
    s_mul_i32 s34, s34, 3
    s_add_u32 s33, s33, s34
    s_sub_u32 s34, s33, 12
    s_cmp_ge_u32 s33, 12
    s_cselect_b32 s35, s34, s33""")
    if "norot3" in OPT: g("s_mov_b32 s35, 0")
    if "rot2" in OPT: g("s_add_u32 s35, s22, s23\ns_and_b32 s35, s35, 1\ns_mul_i32 s35, s35, 6")
    if "rot4" in OPT: g("s_add_u32 s35, s22, s23\ns_and_b32 s35, s35, 3\ns_mul_i32 s35, s35, 3")
    gaddr("s35")
    g(f"s_add_u32 s36, s16, {48*40960}\ns_add_u32 s37, s17, {12*8192}")
    SPJ=int(os.environ.get("SPJ","0"))
    def loads(j):
        if j<12: return ldh(j)+ldw(j)+[lambda: g("s_cmp_eq_u32 s38, s36\ns_cselect_b32 s38, s16, s38\ns_cselect_b32 s39, s17, s39" if j<11 else "s_mov_b32 s38, s36\ns_mov_b32 s39, s37")]
        o=ldw(j) if j<17 else []
        for q in range(12,17):
            if max(q,SPJ+LKA)==j: o+=ldh(q)
        return o
    g.lwait0()
    NPRE=int(os.environ.get("NPRE","0")); VAJ=int(os.environ.get("VAJ","0"))
    stamp(g,1)
    for j in range(LKA):
        VAK=int(os.environ.get("VAK","-1"))
        for q,op in enumerate(loads(j)):
            if j==0 and q==VAK: g("v_mov_b32 v2, 0"); g.vwait(stg[2]); arrive(2,2,3)
            op()
        if j==VAJ and VAK<0: g("v_mov_b32 v2, 0"); g.vwait(stg[2]); arrive(2,2,3)
    if "ts" in OPT: g("s_mov_b32 s93, 0")
    for j in range(17):
        if j>=12:
            g.vwait(to[j,3]); chk(j); g(f"s_cbranch_vccnz RT_{j}\nRTB_{j}:")
            if j==12: stamp(g,6); rstamp(g,53)
        if j==max(12-LKA,SPJ): stamp(g,5); rstamp(g,54)
        mm(j,loads(j+LKA))
        if j in (0,5): stamp(g,2+j//5)
        if j==13: xres()
        if j==15: g("v_mov_b32 v2, 40960"); spin(3,2,3,4)
    g("s_nop 7")
    stamp(g,7)
    if "ts" in OPT: g("v_writelane_b32 v25, s93, 52")
    for f in range(wn[0],20): g.ds(f"ds_write_b128 v11, {vr(ACC+4*f,4)} offset:{f*1024}")
    g.vwait0(); g(f"s_branch {LR}")
    for q in range(12,17): retry(q)
    g(f"{LA}:")
    g.restore(st0)
    if "prio" in OPT: g("s_setprio 1")
    g(f"""v_lshrrev_b32 v2, 5, v0
    v_and_b32 v3, 31, v0
    s_lshl_b32 s31, s27, 2
    s_add_u32 s31, s31, s25
    s_mul_i32 s33, s31, {QKV_TB}
    s_add_u32 s33, s33, s30
    v_lshlrev_b32 v4, 3, v3
    v_lshl_add_u32 v5, v2, 9, v4""")
    for hh,q in ((0,16),(1,72)):
        g.vmem(f"buffer_load_dwordx2 {vr(q,2)}, v5, s[72:75], s33 offen offset:{1280*hh}")
        g.vmem(f"buffer_load_dwordx2 {vr(q+2,2)}, v5, s[72:75], s33 offen offset:{1280*hh+256}")
        qtok=g.vmem(f"buffer_load_dwordx2 {vr(q+4,2)}, v4, s[72:75], s33 offen offset:{1280*hh+1024}")
    g("v_lshlrev_b32 v6, 2, v2\nv_sub_u32 v6, v3, v6\nv_mov_b32 v7, 0xffff\nv_mov_b32 v13, 0xffff0000")
    for r in range(16): g(f"v_cmp_le_i32 s[{40+2*r}:{41+2*r}], {8*(r//4)+r%4}, v6")
    for k in range(8):
        g(f"v_cndmask_b32 v14, 0, v7, s[{40+4*k}:{41+4*k}]\nv_cndmask_b32 v15, 0, v13, s[{42+4*k}:{43+4*k}]\nv_or_b32 v{64+k}, v14, v15")
    g(f"s_mul_i32 s34, s25, {BS}\nv_cmp_lt_u32 vcc, 31, v0")
    KF=[32,40,48]
    def setup(hh):
        g(f"""v_lshrrev_b32 v6, 1, v3
        v_and_b32 v7, 1, v3
        v_lshlrev_b32 v7, 3, v7
        v_add_u32 v7, s34, v7""")
        for (d,expr) in ((10,f"v_lshl_add_u32 v13, v2, 1, {5*hh}"),(11,"v_add_u32 v13, 1, v13"),(12,f"v_mov_b32 v13, {5*hh+4}")):
            g(expr)
            g(f"""v_and_b32 v14, 7, v13
            v_lshlrev_b32 v14, 1, v14
            v_xor_b32 v14, v14, v6
            v_lshl_add_u32 v14, v14, 4, v7
            v_lshl_add_u32 v{d}, v13, 8, v14""")
        g(f"""s_add_u32 s35, s34, 2560
        v_mov_b32 v13, s35
        v_cndmask_b32 v12, v12, v13, vcc""")
        for k in KF: g(f"v_mov_b32 v{k+6}, 0\nv_mov_b32 v{k+7}, 0")
    def setup2(hh):
        return f"""v_bfe_u32 v6, v0, 4, 1
        v_and_b32 v7, 3, v0
        v_lshl_add_u32 v6, v6, 2, v7
        v_add_u32 v7, {5*hh}, v6
        v_and_b32 v4, 7, v7
        v_lshlrev_b32 v4, 1, v4
        v_bfe_u32 v5, v0, 3, 1
        v_lshl_add_u32 v5, v2, 1, v5
        v_xor_b32 v4, v4, v5
        v_lshlrev_b32 v4, 4, v4
        v_bfe_u32 v5, v0, 2, 1
        v_lshl_add_u32 v4, v5, 3, v4
        v_cmp_lt_u32 s[36:37], 4, v6
        v_lshlrev_b32 v7, 8, v7
        v_mov_b32 v5, 2560
        s_add_u32 s35, s34, {VOFF}
        v_cndmask_b32 v7, v7, v5, s[36:37]
        v_add3_u32 v28, v7, v4, s35
        v_xor_b32 v29, 64, v28
        v_xor_b32 v30, 128, v28
        v_xor_b32 v31, 192, v28
        s_mul_i32 s33, s28, 2560
        v_lshlrev_b32 v6, 4, v3
        v_lshl_add_u32 v6, v2, 9, v6
        s_mul_i32 s35, s31, {HO_TB}
        s_add_u32 s33, s33, s35
        s_add_u32 s33, s33, {192*512}
        v_add_u32 v15, s33, v6""".split("\n")
    setup(0)
    g("v_mov_b32 v22, 0\nv_mov_b32 v23, 0\nv_mov_b32 v78, 0\nv_mov_b32 v79, 0\nv_mov_b32 v6, 0xf149\nv_mov_b32 v56, 0x3f803f80\nv_mov_b32 v57, 0\nv_mov_b32 v27, 0\nv_cndmask_b32 v56, v56, v57, vcc")
    g.vwait(stg[2]); arrive(1,22,26); g.vwait(qtok)
    g("v_cndmask_b32 v20, v20, v6, vcc\nv_cndmask_b32 v21, v21, v22, vcc\nv_cndmask_b32 v76, v76, v6, vcc\nv_cndmask_b32 v77, v77, v22, vcc")
    spin(1,22,6,4); stamp(g,1)
    order=[0,8,1,2,3,4,5,6,7]
    def item(hh,Q):
        kt={}
        def kread(i):
            if i>=9: return
            t=order[i]; k=KF[i%3]
            g.ds(f"ds_read_b64 {vr(k,2)}, v10 offset:{t*BS}"); g.ds(f"ds_read_b64 {vr(k+2,2)}, v11 offset:{t*BS}")
            kt[i]=g.ds(f"ds_read_b64 {vr(k+4,2)}, v12 offset:{t*BS}")
        def mx(t,first):
            b=S+16*t; o=[]
            for k in range(0,16,2):
                a=f"v{13+(k//2)%2}"
                if first and k<4: o.append(f"v_max_f32 {a}, v{b+k}, v{b+k+1}")
                else: o.append(f"v_max3_f32 {a}, v{b+k}, v{b+k+1}, {a}")
            return o
        for i in range(3): kread(i)
        s2=setup2(hh)
        for i in range(9):
            t=order[i]; k=KF[i%3]; g.lwait(kt[i])
            g(f"v_mfma_f32_32x32x16_bf16 {vr(S+16*t,16)}, {vr(k,4)}, {vr(Q,4)}, 0")
            g(f"v_mfma_f32_32x32x16_bf16 {vr(S+16*t,16)}, {vr(k+4,4)}, {vr(Q+4,4)}, {vr(S+16*t,16)}")
            kread(i+3)
            if i<3: g("\n".join(s2[11*i:11*i+11]))
            elif i==3:
                for r in range(16): g(f"v_cndmask_b32 v{S+128+r}, v{S+r}, v{S+128+r}, s[{40+2*r}:{41+2*r}]")
                g("\n".join(mx(8,True)))
            else: g("\n".join(mx(order[i-2],False)))
        VF=[32,36,40,44,48,52]; vt={}
        seq=[(t,m) for t in [1,2,3,4,5,6,7,8,0] for m in range(2)]
        def vread(i):
            if i>=18: return
            t,m=seq[i]; r=VF[i%6]
            g.ds(f"ds_read_b64_tr_b16 {vr(r,2)}, v{28+2*m} offset:{t*BS}")
            vt[i]=g.ds(f"ds_read_b64_tr_b16 {vr(r+2,2)}, v{29+2*m} offset:{t*BS}")
        g("\n".join(mx(6,False)))
        if "ts2" in OPT: stamp(g,10+3*hh)
        if hh==0: spin(2,22,6,4)
        for i in range(6): vread(i)
        g("s_nop 4"); g("\n".join(mx(7,False)))
        g("""v_max_f32 v13, v13, v14
        v_mov_b32 v14, v13
        s_nop 1
        v_permlane32_swap_b32 v13, v14
        v_max_f32 v12, v13, v14
        v_cvt_pk_bf16_f32 v13, -v12, -v12
        v_and_b32 v13, 0xffff0000, v13
        v_sub_f32 v13, -v12, v13
        v_cvt_pk_bf16_f32 v26, -v12, v13
        s_nop 1""")
        def sub(t): g(f"v_mfma_f32_32x32x8bf16_1k {vr(S+16*t,16)}, v[56:57], v[26:27], {vr(S+16*t,16)}")
        sub(1); sub(2); g("s_nop 7\ns_nop 3")
        if "ts2" in OPT: stamp(g,11+3*hh)
        def pv(i):
            t,m=seq[i]; g.lwait(vt[i])
            g(f"v_mfma_f32_32x32x16_bf16 {vr(O,16)}, {vr(VF[i%6],4)}, {vr(S+16*t+8*m,4)}, {'0' if i==0 else vr(O,16)}")
            vread(i+6)
        for i in range(16):
            t,m=seq[i]; b=S+16*t+8*m
            for k in range(8):
                g(f"v_exp_f32 v{b+k}, v{b+k}")
                if k==1 and i>0: pv(i-1)
                if k==5 and m==0 and t+2<=8: sub(t+2)
            for k in range(4): g(f"v_cvt_pk_bf16_f32 v{b+k}, v{b+2*k}, v{b+2*k+1}")
            if t==8:
                for k in range(4):
                    b=S+128+8*m+k
                    g(f"v_and_b32 v{b+4}, v{64+4*m+k}, v{b}\nv_xor_b32 v{S+8*m+k}, v{b+4}, v{b}\nv_mov_b32 v{b}, v{b+4}")
        g("s_nop 1")
        if "ts2" in OPT: stamp(g,12+3*hh)
        for i in (15,16,17): pv(i)
        if hh==0: setup(1)
        else: g("s_nop 7\ns_nop 3")
        g(f"v_rcp_f32 v14, v{O+12}\ns_nop 0")
        for gq in range(3):
            r=O+4*gq; d=((58,60,240),(242,244,62))[hh][gq]
            for k in range(4): g(f"v_mul_f32 v{r+k}, v{r+k}, v14")
            g(f"v_cvt_pk_bf16_f32 v{d}, v{r}, v{r+1}\nv_cvt_pk_bf16_f32 v{d+1}, v{r+2}, v{r+3}")
        def sw(a,b): g(f"v_permlane32_swap_b32 v{a}, v{b}\nv_permlane32_swap_b32 v{a+1}, v{b+1}")
        if hh==0:
            sw(58,60); g.vmem("buffer_store_dwordx4 v[58:61], v15, s[76:79], 0 offen sc1",'st')
        else:
            sw(242,244); sw(246,62); sw(240,244)
            g.vmem("buffer_store_dwordx4 v[240:243], v15, s[76:79], 0 offen offset:1024 sc1",'st')
            g("s_mov_b32 exec_lo, 0")
            g.vmem("buffer_store_dwordx4 v[244:247], v15, s[76:79], 0 offen offset:1536 sc1",'st')
            g("s_mov_b32 exec_lo, -1")
        stamp(g,2+hh)
    item(0,16); item(1,72)
    rstamp(g,50); g("v_mov_b32 v7, 40960\ns_setprio 0"); arrive(3,7,6)
    if "ts" in OPT: g.vwait0(); rstamp(g,51)
    stamp(g,5); xres(); g.vwait0()
    g(f"{LR}:")
    g.lwait0(); g("s_barrier"); stamp(g,8)
    g("v_add_u32 v11, 40960, v10")
    def red(k):
        for w in range(4):
            for h in range(2): g(f"ds_read_b128 {vr(32+8*w+4*h,4)}, v{10+w//2} offset:{(w%2)*PART+256*h+16384*k}")
        for w in range(1,4):
            g(f"s_waitcnt lgkmcnt({6-2*w})")
            for q in range(0,8,2): g(f"v_pk_add_f32 {vr(32+q,2)}, {vr(32+q,2)}, {vr(32+8*w+q,2)}")
        for q in range(4):
            x=16+4*k+q
            g(f"v_lshlrev_b32 v28, 16, v{x}\nv_and_b32 v29, 0xffff0000, v{x}\nv_pk_add_f32 {vr(32+2*q,2)}, {vr(32+2*q,2)}, v[28:29]")
            g(f"v_cvt_pk_bf16_f32 v{x}, v{32+2*q}, v{32+2*q+1}")
        g(f"buffer_store_dwordx4 {vr(16+4*k,4)}, v{8+k}, s[12:15], 0 offen{' sc1' if 'osc1' in OPT else ''}")
    red(0)
    g("s_cmp_ge_u32 s24, 2\ns_cbranch_scc1 RED_DONE"); red(1); g("RED_DONE:")
    stamp(g,9); rstamp(g,63); stamp_store(g,1)
```
